```python
import torch

def _softmax(x, axis=-1):
    return torch.softmax(x, dim=axis)
def _gelu(x):
    return torch.nn.functional.gelu(x, approximate="tanh")
def _silu(x):
    return torch.nn.functional.silu(x)
def _sigmoid(x):
    return torch.sigmoid(x)
def _layernorm(x, axis=-1, eps=1e-5):
    m = x.mean(dim=axis, keepdim=True)
    v = x.var(dim=axis, keepdim=True, unbiased=False)
    return (x - m) / torch.sqrt(v + eps)
def _scatter_add(tgt, idx, src, axis=0):
    return tgt.clone().index_add_(axis, idx, src)
def _segment_sum(src, seg, n):
    out = torch.zeros((n,) + src.shape[1:], dtype=src.dtype)
    return out.index_add_(0, seg, src)
def _pad(x, pw):
    flat = tuple(v for pair in reversed(pw) for v in pair)
    return torch.nn.functional.pad(x, flat)

kernel_name = 'standalone__weight_only_int_omniquant__prompt'

def setup_inputs():

    _w = (lambda a: (lambda t: t.to(torch.bfloat16) if t.is_floating_point() else t)(torch.as_tensor(a)))
    B, S, D, F = 1, 2048, 1024, 3584
    bits = 3
    G = 64 if 64 > 0 else D
    D = (D // G) * G
    ng = D // G
    qmax = (1 << bits) - 1
    qw = torch.randint(0, qmax + 1, (D, F)).to(torch.int32)
    scales = (torch.abs((lambda *s: torch.randn(*s, dtype=torch.bfloat16) * 0.05)(ng, F)) * 0.05 + 0.01).to(float)
    zeros = torch.randint(0, qmax + 1, (ng, F)).to(float)
    act_scale = (torch.abs((lambda *s: torch.randn(*s, dtype=torch.bfloat16) * 0.05)(D)) * 0.5 + 0.5).to(float)
    return {
        "x": _w((lambda *s: torch.randn(*s, dtype=torch.bfloat16) * 0.05)(B, S, D)),
        "qw": _w(qw),
        "scales": _w(scales),
        "zeros": _w(zeros),
        "act_scale": _w(act_scale),
    }

def reference(x, qw, scales, zeros, act_scale):
    B, S, D = x.shape
    ng, F = scales.shape
    G = D // ng
    s = (lambda x, n, axis: torch.repeat_interleave(x, n, dim=axis))(scales, G, axis=0)
    z = (lambda x, n, axis: torch.repeat_interleave(x, n, dim=axis))(zeros, G, axis=0)
    w = ((lambda x, dt: x.to(dt))(qw, x.dtype) - z) * s
    xs = x * (lambda x, dt: x.to(dt))(act_scale, x.dtype)
    return torch.einsum("bsd,df->bsf", xs, w)
```

```python
import sys, argparse

KNAME = "standalone__weight_only_int_omniquant__prompt_kernel"
M, K, N = 2048, 1024, 3584
TM, TN, KS = 256, 112, 64
NSTEP = K // KS

class A:
    def __init__(s): s.l = []
    def __call__(s, x): s.l.append("    " + x)
    def lab(s, x): s.l.append(x + ":")
    def c(s, x): s.l.append("    ; " + x)
    def text(s): return "\n".join(s.l) + "\n"

def vr(b, n=1): return f"v{b}" if n == 1 else f"v[{b}:{b+n-1}]"
def sr(b, n=1): return f"s{b}" if n == 1 else f"s[{b}:{b+n-1}]"

def gen(o):
    a = A()
    NXS = o.nxs
    NQ = o.nq
    XS = 32768
    WS = 14336
    WBASE = NXS * XS
    LDS = WBASE + 2 * WS
    XD = NXS - 1
    S_X, S_Q, S_S, S_Z, S_A, S_O = 4, 8, 12, 16, 20, 24
    sMT, sNT, sWV = 28, 29, 30
    sT = 31
    sXO = 32
    sXL = 33
    sQO = 34
    sTMP = 35; sTMP2 = 36; sTMP3 = 37
    sPO = 38
    sAO = 39
    sEX = 40
    sST = 44
    sWS = 60
    sK24 = 62
    hdr = []
    hdr.append(f"; @launch grid=(256,1,1) block=(512,1,1) lds={LDS}")
    a.l.append('.amdgcn_target "amdgcn-amd-amdhsa--gfx950"')
    a.l.append(".text")
    a.l.append(f".globl {KNAME}")
    a.l.append(".p2align 8")
    a.l.append(f".type {KNAME},@function")
    a.lab(KNAME)
    def stamp(i):
        if o.stamp:
            a(f"s_memrealtime {sr(sST + 2*i, 2)}")
    a("s_cmp_ge_u32 s2, 256")
    a("s_cbranch_scc1 L_end")
    stamp(0)
    a("s_load_dwordx4 s[64:67], s[0:1], 0")
    a("s_load_dwordx4 s[68:71], s[0:1], 16")
    a("s_load_dwordx4 s[72:75], s[0:1], 32")
    a(f"s_load_dwordx2 {sr(sWS,2)}, s[0:1], 56")
    a(f"s_load_dwordx2 s[86:87], s[0:1], 48")
    a("v_lshrrev_b32 v1, 6, v0")
    a("v_and_b32 v0, 63, v0")
    a(f"v_readfirstlane_b32 {sr(sWV)}, v1")
    a("s_and_b32 s35, s2, 7")
    a("s_lshr_b32 s36, s2, 3")
    if o.map == 0:
        a("s_and_b32 s37, s36, 3")
        a("s_lshl_b32 s35, s35, 2")
        a(f"s_add_u32 {sr(sNT)}, s35, s37")
        a(f"s_lshr_b32 {sr(sMT)}, s36, 2")
    elif o.map == 1:
        a("s_and_b32 s37, s35, 1")
        a("s_lshl_b32 s37, s37, 2")
        a("s_and_b32 s38, s36, 3")
        a(f"s_add_u32 {sr(sMT)}, s37, s38")
        a("s_lshr_b32 s35, s35, 1")
        a("s_lshl_b32 s35, s35, 3")
        a("s_lshr_b32 s36, s36, 2")
        a(f"s_add_u32 {sr(sNT)}, s35, s36")
    else:
        a(f"s_and_b32 {sr(sNT)}, s2, 31")
        a(f"s_lshr_b32 {sr(sMT)}, s2, 5")
    a("s_waitcnt lgkmcnt(0)")
    def srd(b, p, size):
        a(f"s_mov_b32 s{b}, s{p}")
        a(f"s_and_b32 s{b+1}, s{p+1}, 0xffff")
        a(f"s_mov_b32 s{b+2}, {size}")
        a(f"s_mov_b32 s{b+3}, 0x20000")
    srd(S_X, 64, M*K*2); srd(S_Q, 66, K*N*4); srd(S_S, 68, 16*N*2); srd(S_Z, 70, 16*N*2); srd(S_A, 72, K*2); srd(S_O, 74, M*N*2)
    a(f"s_cmp_ge_u32 {sr(sWV)}, 4")
    a("s_cbranch_scc1 L_producer")

    ACC = 0
    vLANE = 208
    vXA0, vXA1 = 209, 210
    vWA = [211, 212, 213, 214]
    vO1, vO2 = 215, 216
    vT = [217, 218, 219, 220]
    XF = [112, 128]
    WF = [144, 172]
    OUTR = 112
    if o.prio: a(f"s_setprio {o.prio}")
    a(f"v_mov_b32 v{vLANE}, v0")
    a(f"v_and_b32 v{vT[0]}, 15, v{vLANE}")
    a(f"v_lshrrev_b32 v{vT[1]}, 4, v{vLANE}")
    a(f"v_and_b32 v{vT[2]}, 7, v{vLANE}")
    a(f"v_xor_b32 v{vT[3]}, v{vT[1]}, v{vT[2]}")
    a(f"v_lshlrev_b32 v{vT[3]}, 4, v{vT[3]}")
    a(f"v_lshl_add_u32 v{vXA0}, v{vT[0]}, 7, v{vT[3]}")
    a(f"s_lshl_b32 s35, {sr(sWV)}, 13")
    a(f"v_add_u32 v{vXA0}, s35, v{vXA0}")
    a(f"v_xor_b32 v{vXA1}, 64, v{vXA0}")
    a(f"v_lshrrev_b32 v{vT[3]}, 3, v{vT[0]}")
    a(f"v_lshlrev_b32 v{vT[3]}, 1, v{vT[3]}")
    a(f"v_xor_b32 v{vT[3]}, v{vT[3]}, v{vT[2]}")
    a(f"v_xor_b32 v{vT[3]}, v{vT[3]}, v{vT[1]}")
    a(f"v_lshlrev_b32 v{vT[3]}, 4, v{vT[3]}")
    a(f"v_lshl_add_u32 v{vWA[0]}, v{vT[0]}, 7, v{vT[3]}")
    a(f"v_add_u32 v{vWA[0]}, {WBASE}, v{vWA[0]}")
    a(f"v_xor_b32 v{vWA[1]}, 16, v{vWA[0]}")
    a(f"v_xor_b32 v{vWA[2]}, 64, v{vWA[0]}")
    a(f"v_xor_b32 v{vWA[3]}, 0x50, v{vWA[0]}")
    a(f"s_mov_b32 s35, {N*2}")
    a(f"v_mul_lo_u32 v{vO1}, s35, v{vT[0]}")
    a(f"v_lshl_add_u32 v{vO2}, v{vT[1]}, 3, v{vO1}")
    a(f"v_lshl_add_u32 v{vO1}, v{vT[1]}, 4, v{vO1}")
    for i in range(112): a(f"v_mov_b32 v{i}, 0")
    for i in range(XF[1], XF[1]+16): a(f"v_mov_b32 v{i}, 0")
    for i in range(WF[1], WF[1]+28): a(f"v_mov_b32 v{i}, 0")
    a(f"s_mov_b32 {sr(sT)}, 0")
    a(f"s_mov_b32 s76, {-3*XS & 0xffffffff}"); a(f"s_mov_b32 s77, {XS}")
    a(f"s_mov_b32 s78, {-WS & 0xffffffff}"); a(f"s_mov_b32 s79, {WS}")
    def acc(mb, nb): return (mb*7+nb)*4
    def phase(h_read, set_read, set_mma, do_read=True, do_mma=True):
        reads = []
        if do_read:
            xa = vXA0 if h_read == 0 else vXA1
            for nb in range(7):
                reads.append(f"ds_read_b128 {vr(WF[set_read]+nb*4,4)}, v{vWA[h_read*2+(nb&1)]} offset:{nb*2048}")
                if nb < 4:
                    reads.append(f"ds_read_b128 {vr(XF[set_read]+nb*4,4)}, v{xa} offset:{nb*2048}")
        mm = []
        if do_mma:
            for nb in range(7):
                for mb in range(4):
                    mm.append(f"v_mfma_f32_16x16x32_bf16 {vr(acc(mb,nb),4)}, {vr(WF[set_mma]+nb*4,4)}, {vr(XF[set_mma]+mb*4,4)}, {vr(acc(mb,nb),4)}")
        ri = 0
        for i, m in enumerate(mm):
            if not o.nomfma: a(m)
            if ri < len(reads) and (i % o.rstride == 0):
                if not o.noread: a(reads[ri])
                ri += 1
        while ri < len(reads):
            if not o.noread: a(reads[ri])
            ri += 1
    if o.stamp:
        a("s_barrier") if False else None
        a("s_memtime s[80:81]")
        a("s_memrealtime s[84:85]")
    a.lab("L_cloop")
    a("s_barrier")
    phase(0, 0, 1)
    a("s_waitcnt lgkmcnt(0)")
    phase(1, 1, 0)
    a(f"s_add_u32 {sr(sT)}, {sr(sT)}, 1")
    if NXS == 4:
        a(f"s_and_b32 s35, {sr(sT)}, 3")
        a(f"s_cmp_eq_u32 s35, 0")
        a(f"s_cselect_b32 s36, s76, s77")
    else:
        raise SystemExit("nxs must be 4 for now")
    a(f"s_and_b32 s35, {sr(sT)}, 1")
    a(f"s_cmp_eq_u32 s35, 0")
    a(f"s_cselect_b32 s37, s78, s79")
    a("s_waitcnt lgkmcnt(0)")
    a(f"v_add_u32 v{vXA0}, s36, v{vXA0}")
    a(f"v_add_u32 v{vXA1}, s36, v{vXA1}")
    for i in range(4): a(f"v_add_u32 v{vWA[i]}, s37, v{vWA[i]}")
    a(f"s_cmp_lt_u32 {sr(sT)}, {NSTEP}")
    a("s_cbranch_scc1 L_cloop")
    phase(0, 0, 1, do_read=False)
    stamp(2)
    if o.stamp:
        a("s_memtime s[82:83]")
    a("s_nop 7"); a("s_nop 1")
    a(f"s_lshl_b32 s35, {sr(sMT)}, 8")
    a(f"s_lshl_b32 s36, {sr(sWV)}, 6")
    a("s_add_u32 s35, s35, s36")
    a(f"s_mul_i32 s35, s35, {N*2}")
    a(f"s_mul_i32 s36, {sr(sNT)}, {TN*2}")
    a("s_add_u32 s35, s35, s36")
    r = OUTR
    for mb in range(4):
        for P in range(3):
            for b in range(2):
                c = acc(mb, 2*P+b)
                a(f"v_cvt_pk_bf16_f32 v{r+2*b}, v{c}, v{c+1}")
                a(f"v_cvt_pk_bf16_f32 v{r+2*b+1}, v{c+2}, v{c+3}")
            if not o.nostore: a(f"buffer_store_dwordx4 {vr(r,4)}, v{vO1}, {sr(S_O,4)}, s35 offen offset:{P*64}")
            r += 4
        c = acc(mb, 6)
        a(f"v_cvt_pk_bf16_f32 v{r}, v{c}, v{c+1}")
        a(f"v_cvt_pk_bf16_f32 v{r+1}, v{c+2}, v{c+3}")
        if not o.nostore: a(f"buffer_store_dwordx2 {vr(r,2)}, v{vO2}, {sr(S_O,4)}, s35 offen offset:192")
        r += 4
        if mb < 3: a(f"s_add_u32 s35, s35, {16*N*2}")
    if o.stamp:
        stamp(3)
        a("s_waitcnt vmcnt(0)")
        stamp(4)
        a(f"s_cmp_eq_u32 {sr(sWV)}, 0")
        a("s_cbranch_scc0 L_end")
        a("s_waitcnt lgkmcnt(0)")
        a(f"s_lshl_b32 s35, s2, 6")
        a(f"s_add_u32 s35, s35, {128<<20}")
        a(f"s_add_u32 {sr(sWS)}, {sr(sWS)}, s35")
        a(f"s_addc_u32 {sr(sWS+1)}, {sr(sWS+1)}, 0")
        a("v_mov_b32 v1, 0")
        a("s_sub_u32 s82, s82, s80")
        a("s_subb_u32 s83, s83, s81")
        a("v_mov_b32 v2, s82")
        a("v_mov_b32 v3, s83")
        a(f"global_store_dwordx2 v1, v[2:3], {sr(sWS,2)} offset:56")
        a("s_nop 1")
        a(f"s_sub_u32 s84, {sr(sST+4)}, s84")
        a("v_mov_b32 v2, s84")
        a(f"global_store_dword v1, v2, s[86:87]")
        a("s_nop 1")
        for i in (0, 2, 3, 4):
            a(f"v_mov_b32 v2, {sr(sST+2*i)}")
            a(f"v_mov_b32 v3, {sr(sST+2*i+1)}")
            a(f"global_store_dwordx2 v1, v[2:3], {sr(sWS,2)} offset:{i*8}")
            a("s_nop 1")
    a("s_endpgm")

    a.lab("L_producer")
    QS = 40
    QB = [i*QS for i in range(NQ)]
    R = NQ*QS
    pLANE = R; pXV = R+1; pQV = R+2; pPV = R+3; pAV = R+4
    pWA = [R+5, R+6, R+7, R+8]
    R2 = (R+9+3)//4*4
    pSP = [R2+i for i in range(4)]; pZS = [R2+4+i for i in range(4)]
    pAF = [R2+8+i for i in range(8)]
    pOUT = [R2+16+4*i for i in range(4)]
    pT = [R2+32+i for i in range(8)]
    assert R2+40 <= 256
    a(f"v_mov_b32 v{pLANE}, v0")
    a(f"s_sub_u32 {sr(sWV)}, {sr(sWV)}, 4")
    a(f"v_lshrrev_b32 v{pT[0]}, 3, v{pLANE}")
    a(f"v_and_b32 v{pT[1]}, 7, v{pLANE}")
    a(f"v_xor_b32 v{pT[1]}, v{pT[1]}, v{pT[0]}")
    a(f"v_lshlrev_b32 v{pT[1]}, 4, v{pT[1]}")
    a(f"v_lshl_add_u32 v{pXV}, v{pT[0]}, 11, v{pT[1]}")
    a(f"s_lshl_b32 s35, {sr(sMT)}, 8")
    a(f"s_lshl_b32 s36, {sr(sWV)}, 6")
    a("s_add_u32 s35, s35, s36")
    a(f"s_lshl_b32 {sr(sXO)}, s35, 11")
    a(f"s_lshl_b32 {sr(sXL)}, {sr(sWV)}, 13")
    a(f"v_lshrrev_b32 v{pT[0]}, 5, v{pLANE}")
    a(f"v_and_b32 v{pT[1]}, 31, v{pLANE}")
    a(f"s_lshl_b32 s35, {sr(sWV)}, 1")
    a(f"v_add_u32 v{pT[2]}, s35, v{pT[0]}")
    a(f"s_mov_b32 s35, {8*N*4}")
    a(f"v_mul_lo_u32 v{pQV}, s35, v{pT[2]}")
    a(f"v_lshl_add_u32 v{pQV}, v{pT[1]}, 4, v{pQV}")
    a(f"s_mul_i32 s36, {sr(sNT)}, {TN*4}")
    a(f"v_add_u32 v{pQV}, s36, v{pQV}")
    a(f"s_mul_i32 s36, {sr(sNT)}, {TN*2}")
    a(f"v_lshlrev_b32 v{pPV}, 3, v{pT[1]}")
    a(f"v_add_u32 v{pPV}, s36, v{pPV}")
    a(f"v_lshlrev_b32 v{pAV}, 4, v{pT[2]}")
    a(f"v_cmp_gt_u32 vcc, 28, v{pT[1]}")
    a(f"s_mov_b64 {sr(sEX,2)}, vcc")
    a(f"v_mov_b32 v{pT[3]}, 0x7ff00000")
    a("s_nop 1")
    a(f"v_cndmask_b32 v{pQV}, v{pT[3]}, v{pQV}, vcc")
    a(f"v_cndmask_b32 v{pPV}, v{pT[3]}, v{pPV}, vcc")
    a(f"v_lshrrev_b32 v{pT[3]}, 3, v{pT[1]}")
    a(f"v_lshlrev_b32 v{pT[3]}, 5, v{pT[3]}")
    a(f"v_and_b32 v{pT[4]}, 1, v{pT[1]}")
    a(f"v_lshl_add_u32 v{pT[3]}, v{pT[4]}, 4, v{pT[3]}")
    a(f"v_bfe_u32 v{pT[5]}, v{pT[1]}, 1, 2")
    a(f"v_lshl_add_u32 v{pT[3]}, v{pT[5]}, 2, v{pT[3]}")
    a(f"v_lshlrev_b32 v{pT[6]}, 2, v{pT[1]}")
    a(f"v_cmp_gt_u32 vcc, 24, v{pT[1]}")
    a("s_nop 1")
    a(f"v_cndmask_b32 v{pT[3]}, v{pT[6]}, v{pT[3]}, vcc")
    a(f"v_and_b32 v{pT[4]}, 7, v{pT[3]}")
    a(f"v_bfe_u32 v{pT[5]}, v{pT[3]}, 4, 1")
    a(f"v_xor_b32 v{pT[4]}, v{pT[4]}, v{pT[5]}")
    a(f"v_bfe_u32 v{pT[5]}, v{pT[3]}, 3, 1")
    a(f"v_lshlrev_b32 v{pT[5]}, 1, v{pT[5]}")
    a(f"v_xor_b32 v{pT[4]}, v{pT[4]}, v{pT[5]}")
    a(f"v_xor_b32 v{pT[4]}, v{pT[4]}, v{pT[2]}")
    for i in range(4):
        a(f"v_xor_b32 v{pT[5]}, {i}, v{pT[4]}")
        a(f"v_lshlrev_b32 v{pT[5]}, 4, v{pT[5]}")
        a(f"v_add_u32 v{pT[6]}, {i}, v{pT[3]}")
        a(f"v_lshl_add_u32 v{pWA[i]}, v{pT[6]}, 7, v{pT[5]}")
        a(f"v_add_u32 v{pWA[i]}, {WBASE}, v{pWA[i]}")
    a(f"s_mov_b32 {sr(sK24)}, 0x4b800000")

    NV_X = 8; NV_Q = 11
    def sreg_mul(dst, step, mul):
        return
    def issue_x(step_sgpr_expr):
        for j in range(8):
            a(f"s_add_u32 m0, s36, {j*1024}")
            a(f"s_add_u32 s37, s35, {j*8*2048}")
            if not o.nox: a(f"buffer_load_dwordx4 v{pXV}, {sr(S_X,4)}, s37 offen lds")
    def issue_x_step_static(t):
        a(f"s_add_u32 s35, {sr(sXO)}, {t*128}")
        a(f"s_add_u32 s36, {sr(sXL)}, {(t % NXS)*XS}")
        issue_x(None)
    def issue_q(setb, qoff_s, poff_s, aoff_s):
        a(f"buffer_load_dwordx2 {vr(setb+32,2)}, v{pPV}, {sr(S_S,4)}, {poff_s} offen")
        a(f"buffer_load_dwordx2 {vr(setb+34,2)}, v{pPV}, {sr(S_Z,4)}, {poff_s} offen")
        a(f"buffer_load_dwordx4 {vr(setb+36,4)}, v{pAV}, {sr(S_A,4)}, {aoff_s} offen")
        for i in range(8):
            if i == 0:
                src = qoff_s
            else:
                a(f"s_add_u32 s37, {qoff_s}, {i*N*4}")
                src = "s37"
            if not o.noq: a(f"buffer_load_dwordx4 {vr(setb+4*i,4)}, v{pQV}, {sr(S_Q,4)}, {src} offen")
    def issue_q_static(t):
        a(f"s_mov_b32 {sr(sQO)}, {t*64*N*4}")
        a(f"s_mov_b32 {sr(sPO)}, {t*N*2}")
        a(f"s_mov_b32 {sr(sAO)}, {t*128}")
        issue_q(QB[t % NQ], sr(sQO), sr(sPO), sr(sAO))
    def dequant(setb, wslot_off):
        q = setb; S = setb+32; Z = setb+34; AA = setb+36
        if o.nodq:
            return
        for c in range(4):
            if c & 1 == 0:
                a(f"v_lshlrev_b32 v{pSP[c]}, 16, v{S+c//2}")
                a(f"v_lshlrev_b32 v{pZS[c]}, 16, v{Z+c//2}")
            else:
                a(f"v_and_b32 v{pSP[c]}, 0xffff0000, v{S+c//2}")
                a(f"v_and_b32 v{pZS[c]}, 0xffff0000, v{Z+c//2}")
        for c in range(4):
            a(f"v_mul_f32 v{pZS[c]}, -v{pZS[c]}, v{pSP[c]}")
        if o.mix:
            for c in range(4):
                a(f"v_mul_f32 v{pSP[c]}, {sr(sK24)}, v{pSP[c]}")
        for i in range(8):
            if i & 1 == 0: a(f"v_lshlrev_b32 v{pAF[i]}, 16, v{AA+i//2}")
            else: a(f"v_and_b32 v{pAF[i]}, 0xffff0000, v{AA+i//2}")
        for c in range(4):
            for i in range(8):
                if o.mix:
                    a(f"v_fma_mix_f32 v{pT[i]}, v{q+4*i+c}, v{pSP[c]}, v{pZS[c]} op_sel_hi:[1,0,0]")
                else:
                    a(f"v_cvt_f32_i32 v{pT[i]}, v{q+4*i+c}")
                    a(f"v_fma_f32 v{pT[i]}, v{pT[i]}, v{pSP[c]}, v{pZS[c]}")
            if o.pk:
                for i in range(0, 8, 2):
                    a(f"v_pk_mul_f32 {vr(pT[i],2)}, {vr(pT[i],2)}, {vr(pAF[i],2)}")
            else:
                for i in range(8):
                    a(f"v_mul_f32 v{pT[i]}, v{pT[i]}, v{pAF[i]}")
            for i in range(0, 8, 2):
                a(f"v_cvt_pk_bf16_f32 v{pOUT[c]+i//2}, v{pT[i]}, v{pT[i+1]}")
            a(f"s_mov_b64 exec, {sr(sEX,2)}")
            a(f"ds_write_b128 v{pWA[c]}, {vr(pOUT[c],4)} offset:{wslot_off}")
            a("s_mov_b64 exec, -1")
    nx = 0 if o.nox else NV_X
    nq = NV_Q - (8 if o.noq else 0)
    seq = []
    def rec(kind, t): seq.append((kind, t))
    def cnt_after(kind, t):
        n = 0; found = False
        for (k2, t2) in seq:
            if found: n += (nx if k2 == 'X' else nq)
            if (k2, t2) == (kind, t): found = True
        assert found
        return n
    for t in range(max(NQ, XD)):
        if t < NQ: issue_q_static(t); rec('Q', t)
        if t < XD: issue_x_step_static(t); rec('X', t)
    stamp(1)
    a(f"s_waitcnt vmcnt({min(63,cnt_after('Q',0))})")
    dequant(QB[0], 0)
    issue_q_static(NQ); rec('Q', NQ)
    a(f"s_waitcnt vmcnt({min(63,cnt_after('X',0))}) lgkmcnt(0)")
    a("s_barrier")
    stamp(5)
    period = o.punroll
    def epoch(e, dyn):
        if e + XD < NSTEP:
            issue_x_step_static(e + XD); rec('X', e + XD)
        a(f"s_waitcnt vmcnt({min(63,cnt_after('Q', e+1))})")
        dequant(QB[(e+1) % NQ], ((e+1) % 2) * WS)
        if e + 1 + NQ < NSTEP:
            issue_q_static(e + 1 + NQ); rec('Q', e + 1 + NQ)
        a(f"s_waitcnt vmcnt({min(63,cnt_after('X', e+1))}) lgkmcnt(0)")
        a("s_barrier")
    for e in range(NSTEP - 1):
        epoch(e, False)
    stamp(6)
    if o.stamp:
        a(f"s_cmp_eq_u32 {sr(sWV)}, 0")
        a("s_cbranch_scc0 L_end")
        a("s_waitcnt lgkmcnt(0)")
        a(f"s_lshl_b32 s35, s2, 6")
        a(f"s_add_u32 s35, s35, {128<<20}")
        a(f"s_add_u32 {sr(sWS)}, {sr(sWS)}, s35")
        a(f"s_addc_u32 {sr(sWS+1)}, {sr(sWS+1)}, 0")
        a("v_mov_b32 v1, 0")
        for i in (1, 5, 6):
            a(f"v_mov_b32 v2, {sr(sST+2*i)}")
            a(f"v_mov_b32 v3, {sr(sST+2*i+1)}")
            a(f"global_store_dwordx2 v1, v[2:3], {sr(sWS,2)} offset:{i*8}")
            a("s_nop 1")
    a.lab("L_end")
    a("s_endpgm")
    a.l.append('.section .rodata,"a"')
    a.l.append(".p2align 6")
    a.l.append(f".amdhsa_kernel {KNAME}")
    for d in ["next_free_vgpr 256", "next_free_sgpr 96", "accum_offset 256", "group_segment_fixed_size 0", "kernarg_size 64",
              "user_sgpr_count 2", "user_sgpr_kernarg_segment_ptr 1", "system_sgpr_workgroup_id_x 1"]:
        a.l.append("  .amdhsa_" + d)
    a.l.append(".end_amdhsa_kernel")
    return "\n".join(hdr) + "\n" + a.text()

if __name__ == "__main__":
    p = argparse.ArgumentParser()
    p.add_argument("-o", default="f.s")
    p.add_argument("--nxs", type=int, default=4)
    p.add_argument("--nq", type=int, default=3)
    p.add_argument("--map", type=int, default=0)
    p.add_argument("--stamp", type=int, default=0)
    p.add_argument("--mix", type=int, default=1)
    p.add_argument("--pk", type=int, default=0)
    p.add_argument("--prio", type=int, default=0)
    p.add_argument("--rstride", type=int, default=2)
    p.add_argument("--punroll", type=int, default=16)
    for f in ("nomfma", "noread", "nostore", "nox", "noq", "nodq"):
        p.add_argument("--" + f, type=int, default=0)
    o = p.parse_args()
    open(o.o, "w").write(gen(o))
```

```python
import sys, argparse

KNAME = "standalone__weight_only_int_omniquant__prompt_kernel"
M, K, N = 2048, 1024, 3584
TM, TN, KS = 256, 128, 64
NSTEP = K // KS
NWG = (M // TM) * (N // TN)

class A:
    def __init__(s): s.l = []
    def __call__(s, x): s.l.append("    " + x)
    def lab(s, x): s.l.append(x + ":")
    def raw(s, x): s.l.append(x)
    def text(s): return "\n".join(s.l) + "\n"

def vr(b, n=1): return f"v{b}" if n == 1 else f"v[{b}:{b+n-1}]"
def sr(b, n=1): return f"s{b}" if n == 1 else f"s[{b}:{b+n-1}]"

def gen(o):
    a = A()
    SLOT = 49152
    WOFF = 32768
    WSZ = 16384
    CNT = 3 * SLOT
    LDS = CNT + 64
    M32 = (o.mfma == 32)
    S_X, S_Q, S_S, S_Z, S_A, S_O, S_W, S_D = 4, 8, 12, 16, 20, 24, 92, 96
    S_W, S_D = 88, 92
    sMT, sNT, sWV, sG0 = 28, 29, 30, 31
    sT = 32
    sXO, sXL = 33, 34
    t0, t1, t2, t3, t4 = 35, 36, 37, 38, 39
    sK24 = 40
    sP, sU = 41, 42
    sWO = 43
    sC = 44
    sFO = 100
    sST = 48
    sWS = 64
    sDBG = 66
    KA = 68
    sCY = 84
    hdr = [f"; @launch grid=({256 if o.helper else NWG},1,1) block=(512,1,1) lds={LDS}"]
    a.raw('.amdgcn_target "amdgcn-amd-amdhsa--gfx950"')
    a.raw(".text"); a.raw(f".globl {KNAME}"); a.raw(".p2align 8"); a.raw(f".type {KNAME},@function")
    a.lab(KNAME)
    def stamp(i):
        if o.stamp: a(f"s_memrealtime {sr(sST + 2*i, 2)}")
    def dump_stamps(idxs, extra=None):
        a("s_waitcnt lgkmcnt(0)")
        a(f"s_lshl_b32 s{t0}, s2, 6")
        a(f"s_add_u32 s{t0}, s{t0}, {128<<20}")
        a(f"s_add_u32 {sr(sWS)}, s82, s{t0}")
        a(f"s_addc_u32 {sr(sWS+1)}, s83, 0")
        a("v_mov_b32 v1, 0")
        if extra: extra()
        for i in idxs:
            a(f"v_mov_b32 v2, {sr(sST+2*i)}")
            a(f"v_mov_b32 v3, {sr(sST+2*i+1)}")
            a(f"global_store_dwordx2 v1, v[2:3], {sr(sWS,2)} offset:{i*8}")
            a("s_nop 1")
    def srd(b, p, size):
        a(f"s_mov_b32 s{b}, s{p}")
        a(f"s_and_b32 s{b+1}, s{p+1}, 0xffff")
        a(f"s_mov_b32 s{b+2}, {size}")
        a(f"s_mov_b32 s{b+3}, 0x20000")
    if o.helper:
        a("s_cmp_ge_u32 s2, 256")
        a("s_cbranch_scc1 L_end")
        a(f"s_cmp_ge_u32 s2, {NWG}")
        a("s_cbranch_scc1 L_helper")
    else:
        a(f"s_cmp_ge_u32 s2, {NWG}")
        a("s_cbranch_scc1 L_end")
    stamp(0)
    a(f"s_load_dwordx4 {sr(KA,4)}, s[0:1], 0")
    a(f"s_load_dwordx4 {sr(KA+4,4)}, s[0:1], 16")
    a(f"s_load_dwordx4 {sr(KA+8,4)}, s[0:1], 32")
    a(f"s_load_dwordx4 {sr(KA+12,4)}, s[0:1], 48")
    a("v_lshrrev_b32 v1, 6, v0")
    a("v_and_b32 v0, 63, v0")
    a(f"v_readfirstlane_b32 {sr(sWV)}, v1")
    a(f"s_and_b32 s{t0}, s2, 7")
    a(f"s_lshr_b32 s{t1}, s2, 3")
    a(f"s_mul_i32 s{t0}, s{t0}, 28")
    a(f"s_add_u32 s{t0}, s{t0}, s{t1}")
    a(f"s_lshr_b32 {sr(sNT)}, s{t0}, 3")
    a(f"s_and_b32 {sr(sMT)}, s{t0}, 7")
    a(f"s_lshl_b32 {sr(sG0)}, {sr(sMT)}, 1")
    a(f"s_and_b32 {sr(sP)}, {sr(sWV)}, 3")
    a(f"s_lshr_b32 {sr(sU)}, {sr(sWV)}, 2")
    a(f"s_xor_b32 {sr(sU)}, {sr(sU)}, 1")
    vL = 254
    a(f"v_mov_b32 v{vL}, v0")
    a(f"s_cmp_ge_u32 {sr(sWV)}, 4")
    a("s_cbranch_scc1 L_loader")

    XF = [128, 144]; WF = [160, 192]
    B = 224
    vLANE = vL
    vXA = [B+1, B+2, B+3, B+4]; vWA = [B+5, B+6, B+7, B+8]
    vT = [B+9+i for i in range(12)]
    if o.prio: a(f"s_setprio {o.prio}")
    a(f"v_mov_b32 v{vT[0]}, {CNT}")
    a(f"v_mov_b32 v{vT[1]}, 0")
    a(f"ds_write_b32 v{vT[0]}, v{vT[1]}")
    lo = vT[5]; hi = vT[6]; f = vT[7]; tt = vT[8]
    if M32:
        a(f"v_and_b32 v{lo}, 31, v{vLANE}")
        a(f"v_lshrrev_b32 v{hi}, 5, v{vLANE}")
        a(f"v_bfe_u32 v{f}, v{vLANE}, 1, 3")
        a(f"v_xor_b32 v{tt}, v{hi}, v{f}")
        a(f"v_lshlrev_b32 v{tt}, 4, v{tt}")
        a(f"v_lshl_add_u32 v{vXA[0]}, v{lo}, 7, v{tt}")
        a(f"s_lshl_b32 s{t0}, {sr(sWV)}, 13")
        a(f"v_add_u32 v{vXA[0]}, s{t0}, v{vXA[0]}")
        a(f"v_xor_b32 v{vXA[1]}, 32, v{vXA[0]}")
        a(f"v_xor_b32 v{vXA[2]}, 64, v{vXA[0]}")
        a(f"v_xor_b32 v{vXA[3]}, 96, v{vXA[0]}")
        a(f"v_bfe_u32 v{tt}, v{vLANE}, 4, 1")
        a(f"v_xor_b32 v{f}, v{f}, v{tt}")
        a(f"v_xor_b32 v{tt}, v{hi}, v{f}")
        a(f"v_lshlrev_b32 v{tt}, 4, v{tt}")
        a(f"v_lshl_add_u32 v{vWA[0]}, v{lo}, 7, v{tt}")
        a(f"v_add_u32 v{vWA[0]}, {WOFF}, v{vWA[0]}")
        a(f"v_xor_b32 v{vWA[1]}, 32, v{vWA[0]}")
        a(f"v_xor_b32 v{vWA[2]}, 64, v{vWA[0]}")
        a(f"v_xor_b32 v{vWA[3]}, 96, v{vWA[0]}")
    else:
        a(f"v_and_b32 v{lo}, 15, v{vLANE}")
        a(f"v_lshrrev_b32 v{hi}, 4, v{vLANE}")
        a(f"v_bfe_u32 v{f}, v{vLANE}, 1, 3")
        a(f"v_xor_b32 v{tt}, v{hi}, v{f}")
        a(f"v_lshlrev_b32 v{tt}, 4, v{tt}")
        a(f"v_lshl_add_u32 v{vWA[0]}, v{lo}, 7, v{tt}")
        a(f"s_lshl_b32 s{t0}, {sr(sWV)}, 13")
        a(f"v_add_u32 v{vXA[0]}, s{t0}, v{vWA[0]}")
        a(f"v_xor_b32 v{vXA[1]}, 64, v{vXA[0]}")
        a(f"v_add_u32 v{vWA[0]}, {WOFF}, v{vWA[0]}")
        a(f"v_xor_b32 v{vWA[1]}, 16, v{vWA[0]}")
        a(f"v_xor_b32 v{vWA[2]}, 64, v{vWA[0]}")
        a(f"v_xor_b32 v{vWA[3]}, 0x50, v{vWA[0]}")
    a("s_waitcnt lgkmcnt(0)")
    for i in range(128): a(f"v_mov_b32 v{i}, 0")
    for i in range(XF[1], XF[1]+16): a(f"v_mov_b32 v{i}, 0")
    for i in range(WF[1], WF[1]+32): a(f"v_mov_b32 v{i}, 0")
    a(f"s_mov_b32 {sr(sT)}, 0")
    a(f"s_mov_b32 s{sC}, {SLOT}"); a(f"s_mov_b32 s{sC+1}, {-2*SLOT & 0xffffffff}")
    a(f"s_mov_b32 s{sC+2}, 0")
    if o.stamp:
        a(f"s_memtime {sr(sCY,2)}")
    def phase(h, sread, smma, do_read=True, do_mma=True):
        reads = []
        if do_read:
            if M32:
                for ks in range(2):
                    for nb in range(4):
                        reads.append(f"ds_read_b128 {vr(WF[sread]+(ks*4+nb)*4,4)}, v{vWA[h*2+ks]} offset:{nb*4096}")
                        if nb < 2:
                            reads.append(f"ds_read_b128 {vr(XF[sread]+(ks*2+nb)*4,4)}, v{vXA[h*2+ks]} offset:{nb*4096}")
            else:
                for nb in range(8):
                    reads.append(f"ds_read_b128 {vr(WF[sread]+nb*4,4)}, v{vWA[h*2+(nb&1)]} offset:{nb*2048}")
                    if nb < 4:
                        reads.append(f"ds_read_b128 {vr(XF[sread]+nb*4,4)}, v{vXA[h]} offset:{nb*2048}")
        mm = []
        if do_mma:
            if M32:
                for ks in range(2):
                    for nb in range(4):
                        for mb in range(2):
                            c = (mb*4+nb)*16
                            mm.append(f"v_mfma_f32_32x32x16_bf16 {vr(c,16)}, {vr(WF[smma]+(ks*4+nb)*4,4)}, {vr(XF[smma]+(ks*2+mb)*4,4)}, {vr(c,16)}")
            else:
                for nb in range(8):
                    for mb in range(4):
                        c = (mb*8+nb)*4
                        mm.append(f"v_mfma_f32_16x16x32_bf16 {vr(c,4)}, {vr(WF[smma]+nb*4,4)}, {vr(XF[smma]+mb*4,4)}, {vr(c,4)}")
        ri = 0
        rstride = o.rstride if not M32 else 1
        for i, m in enumerate(mm):
            if not o.nomfma: a(m)
            if ri < len(reads) and (i % rstride == 0):
                a(reads[ri]); ri += 1
        while ri < len(reads):
            a(reads[ri]); ri += 1
    nxa = 4 if M32 else 2
    a.lab("L_cloop")
    a("s_barrier")
    phase(0, 0, 1)
    a("s_waitcnt lgkmcnt(0)")
    phase(1, 1, 0)
    a(f"s_add_u32 {sr(sT)}, {sr(sT)}, 1")
    a(f"s_add_u32 s{sC+2}, s{sC+2}, 1")
    a(f"s_cmp_eq_u32 s{sC+2}, 3")
    a(f"s_cselect_b32 s{t1}, s{sC+1}, s{sC}")
    a(f"s_cselect_b32 s{sC+2}, 0, s{sC+2}")
    a("s_waitcnt lgkmcnt(0)")
    for i in range(nxa): a(f"v_add_u32 v{vXA[i]}, s{t1}, v{vXA[i]}")
    for i in range(4): a(f"v_add_u32 v{vWA[i]}, s{t1}, v{vWA[i]}")
    a(f"s_cmp_lt_u32 {sr(sT)}, {NSTEP}")
    a("s_cbranch_scc1 L_cloop")
    phase(0, 0, 1, do_read=False)
    stamp(2)
    if o.stamp: a(f"s_memtime {sr(sCY+2,2)}")
    a("s_barrier")
    E = vT
    srd(S_O, KA+10, M*N*2)
    a(f"s_lshl_b32 s{t0}, {sr(sWV)}, 14")
    if M32:
        a(f"v_and_b32 v{E[0]}, 31, v{vLANE}")
        a(f"v_lshrrev_b32 v{E[1]}, 5, v{vLANE}")
    else:
        a(f"v_and_b32 v{E[0]}, 15, v{vLANE}")
        a(f"v_lshrrev_b32 v{E[1]}, 4, v{vLANE}")
    a(f"v_and_b32 v{E[2]}, 7, v{vLANE}")
    a(f"v_xor_b32 v{E[2]}, v{E[2]}, v{E[1]}")
    a(f"v_lshlrev_b32 v{E[2]}, 4, v{E[2]}")
    a(f"v_lshl_add_u32 v{E[3]}, v{E[0]}, 8, v{E[2]}")
    a(f"v_add_u32 v{E[3]}, s{t0}, v{E[3]}")
    a(f"v_xor_b32 v{E[4]}, 64, v{E[3]}")
    if M32:
        a(f"v_xor_b32 v{E[5]}, 32, v{E[3]}")
        a(f"v_xor_b32 v{E[6]}, 96, v{E[3]}")
    a(f"v_lshrrev_b32 v{E[7]}, 4, v{vLANE}")
    a(f"v_and_b32 v{E[8]}, 15, v{vLANE}")
    a(f"v_xor_b32 v{E[9]}, v{E[8]}, v{E[7]}")
    a(f"v_lshlrev_b32 v{E[9]}, 4, v{E[9]}")
    a(f"v_lshl_add_u32 v{E[9]}, v{E[7]}, 8, v{E[9]}")
    a(f"v_add_u32 v{E[9]}, s{t0}, v{E[9]}")
    a(f"v_xor_b32 v{E[10]}, 64, v{E[9]}")
    a(f"s_mov_b32 s{t1}, {N*2}")
    a(f"v_mul_lo_u32 v{E[11]}, s{t1}, v{E[7]}")
    a(f"v_lshl_add_u32 v{E[11]}, v{E[8]}, 4, v{E[11]}")
    a(f"s_lshl_b32 s{t0}, {sr(sMT)}, 8")
    a(f"s_lshl_b32 s{t1}, {sr(sWV)}, 6")
    a(f"s_add_u32 s{t0}, s{t0}, s{t1}")
    a(f"s_mul_i32 s{t0}, s{t0}, {N*2}")
    a(f"s_lshl_b32 s{t1}, {sr(sNT)}, 8")
    a(f"s_add_u32 s{t0}, s{t0}, s{t1}")
    a("s_nop 7")
    TP = XF[0]
    tp = 0
    def nexttmp():
        nonlocal tp
        r = TP + (tp % 24) * 4
        tp += 1
        return r
    nblk = 2 if M32 else 4
    rows_per_blk = 32 if M32 else 16
    nt_ = rows_per_blk // 4
    ldsq = []
    def lds_op(tag, txt):
        a(txt); ldsq.append(tag)
    def wait_for(tag):
        n = len(ldsq) - 1 - ldsq.index(tag)
        a(f"s_waitcnt lgkmcnt({min(n,15)})")
    def Wb(mb):
        if M32:
            for nb in range(4):
                for u in range(2):
                    c = (mb*4+nb)*16 + u*8
                    r = nexttmp()
                    for j in range(4): a(f"v_cvt_pk_bf16_f32 v{r+j}, v{c+2*j}, v{c+2*j+1}")
                    var = [E[3], E[5], E[4], E[6]][(nb & 1)*2 + u]
                    lds_op(('W', mb, nb, u), f"ds_write_b128 v{var}, {vr(r,4)} offset:{(nb>>1)*128 + mb*8192}")
        else:
            for P in range(4):
                r = nexttmp()
                for b in range(2):
                    c = (mb*8+2*P+b)*4
                    a(f"v_cvt_pk_bf16_f32 v{r+2*b}, v{c}, v{c+1}")
                    a(f"v_cvt_pk_bf16_f32 v{r+2*b+1}, v{c+2}, v{c+3}")
                var = E[3] if (P & 1) == 0 else E[4]
                lds_op(('W', mb, P), f"ds_write_b128 v{var}, {vr(r,4)} offset:{(P>>1)*128 + mb*4096}")
    def rbreg(mb, t): return mb*(64 if M32 else 32) + t*4
    def Rb(mb):
        for t in range(nt_):
            tg = mb*nt_ + t
            var = E[9] if (tg & 1) == 0 else E[10]
            lds_op(('R', mb, t), f"ds_read_b128 {vr(rbreg(mb,t),4)}, v{var} offset:{tg*1024}")
    def Sb(mb):
        for t in range(nt_):
            wait_for(('R', mb, t))
            a(f"buffer_store_dwordx4 {vr(rbreg(mb,t),4)}, v{E[11]}, {sr(S_O,4)}, s{t0} offen {o.stflags}")
            a(f"s_add_u32 s{t0}, s{t0}, {4*N*2}")
    Wb(0)
    for mb in range(nblk):
        if mb + 1 < nblk: Wb(mb+1)
        Rb(mb)
        if mb >= 1: Sb(mb-1)
    Sb(nblk-1)
    if o.stamp:
        a("s_waitcnt vmcnt(0)")
        if not o.dbgp: stamp(4)
        a(f"s_cmp_eq_u32 {sr(sWV)}, 0")
        a("s_cbranch_scc0 L_end")
        def extra():
            a(f"s_sub_u32 s{sCY+2}, s{sCY+2}, s{sCY}")
            a(f"s_subb_u32 s{sCY+3}, s{sCY+3}, s{sCY+1}")
            a(f"v_mov_b32 v2, s{sCY+2}"); a(f"v_mov_b32 v3, s{sCY+3}")
            a(f"global_store_dwordx2 v1, v[2:3], {sr(sWS,2)} offset:56"); a("s_nop 1")
        dump_stamps((0, 2) if o.dbgp else (0, 1, 2, 4), extra)
    a("s_endpgm")

    a.lab("L_loader")
    QA, QB_ = 0, 112
    PA, PB_ = 32, 144
    SP = 40; ZS = 44; AF = 48; T = 56; OUT = 64
    vq, vp, va, vo, vcq = 80, 81, 82, 83, 84
    vw = [85, 86, 87, 88]
    x = [89, 90, 91, 92]
    XV = [96+j for j in range(8)]
    vWL = 104
    vFA, vSNAP, vCUR = 105, 106, 107
    FLAGB = 8 << 20
    sXS, sM0 = 45, 46
    a(f"v_lshrrev_b32 v{x[0]}, 5, v{vL}")
    a(f"v_and_b32 v{vcq}, 31, v{vL}")
    a(f"s_lshl_b32 s{t0}, {sr(sP)}, 1")
    a(f"v_add_u32 v{vo}, s{t0}, v{x[0]}")
    a(f"s_mov_b32 s{t0}, {8*N*4}")
    a(f"v_mul_lo_u32 v{vq}, s{t0}, v{vo}")
    a(f"v_lshl_add_u32 v{vq}, v{vcq}, 4, v{vq}")
    a(f"v_lshlrev_b32 v{vp}, 3, v{vcq}")
    a(f"v_lshlrev_b32 v{va}, 4, v{vo}")
    a(f"s_mul_i32 s{t0}, {sr(sG0)}, {64*N*4}")
    a(f"s_lshl_b32 s{t1}, {sr(sNT)}, 9")
    a(f"s_add_u32 s{t0}, s{t0}, s{t1}")
    a(f"s_mul_i32 s{t2}, {sr(sG0)}, {N*2}")
    a(f"s_lshl_b32 s{t1}, {sr(sNT)}, 8")
    a(f"s_add_u32 s{t2}, s{t2}, s{t1}")
    a(f"s_lshl_b32 s{t3}, {sr(sG0)}, 7")
    a(f"v_lshrrev_b32 v{x[0]}, 3, v{vL}")
    a(f"v_and_b32 v{x[1]}, 7, v{vL}")
    a(f"v_lshrrev_b32 v{x[2]}, 1, v{x[0]}")
    a(f"v_xor_b32 v{x[1]}, v{x[1]}, v{x[2]}")
    a(f"v_lshlrev_b32 v{x[1]}, 4, v{x[1]}")
    a(f"v_lshl_add_u32 v{x[1]}, v{x[0]}, 11, v{x[1]}")
    a(f"v_xor_b32 v{x[2]}, 64, v{x[1]}")
    a(f"v_lshlrev_b32 v{vFA}, 7, v{vL}")
    a(f"s_lshl_b32 s{sFO}, {sr(sNT)}, 10")
    a(f"s_add_u32 s{sFO}, s{sFO}, {FLAGB}")
    a("s_waitcnt lgkmcnt(0)")
    srd(S_W, KA+14, FLAGB + 224*128)
    a("s_mov_b64 exec, 0xff")
    a(f"buffer_load_dword v{vSNAP}, v{vFA}, {sr(S_W,4)}, s{sFO} offen sc1")
    a("s_mov_b64 exec, -1")
    srd(S_Q, KA+2, K*N*4)
    def q_issue(Q, P):
        for i in range(8):
            a(f"buffer_load_dwordx4 {vr(Q+4*i,4)}, v{vq}, {sr(S_Q,4)}, s{t0} offen {o.qflags}")
            a(f"s_add_u32 s{t0}, s{t0}, {N*4}")
        a(f"buffer_load_dwordx2 {vr(P,2)}, v{vp}, {sr(S_S,4)}, s{t2} offen")
        a(f"buffer_load_dwordx2 {vr(P+2,2)}, v{vp}, {sr(S_Z,4)}, s{t2} offen")
        a(f"buffer_load_dwordx4 {vr(P+4,4)}, v{va}, {sr(S_A,4)}, s{t3} offen")
    srd(S_S, KA+4, 16*N*2); srd(S_Z, KA+6, 16*N*2); srd(S_A, KA+8, K*2)
    q_issue(QA, PA)
    srd(S_X, KA, M*K*2)
    for j in range(8):
        src = x[1] if j % 2 == 0 else x[2]
        a(f"v_add_u32 v{XV[j]}, {j*16384 - 1024*(j%4)}, v{src}")
    a(f"v_lshlrev_b32 v{vWL}, 4, v{vL}")
    a(f"s_lshl_b32 s{t1}, {sr(sMT)}, 8")
    a(f"s_lshl_b32 s{t4}, {sr(sP)}, 6")
    a(f"s_add_u32 s{t1}, s{t1}, s{t4}")
    a(f"s_lshl_b32 {sr(sXO)}, s{t1}, 11")
    a(f"s_lshl_b32 {sr(sXL)}, {sr(sP)}, 13")
    def x_dma():
        for j in range(8):
            if j % 4 == 0:
                a(f"s_add_u32 m0, s{sM0}, {(j//4)*4096}")
                a("s_nop 0")
            a(f"buffer_load_dwordx4 v{XV[j]}, {sr(S_X,4)}, s{sXS} offen offset:{(j%4)*1024} {o.xflags} lds")
    a(f"s_lshl_b32 s{sXS}, {sr(sG0)}, 7")
    a(f"s_add_u32 s{sXS}, s{sXS}, {sr(sXO)}")
    a(f"s_mov_b32 s{sM0}, {sr(sXL)}")
    x_dma()
    sQB, sPB_, sAB = 97, 98, 99
    a(f"s_add_u32 s{sQB}, s{t0}, {56*N*4}")
    a(f"s_add_u32 s{sPB_}, s{t2}, {N*2}")
    a(f"s_add_u32 s{sAB}, s{t3}, 128")
    if M32:
        a(f"v_lshrrev_b32 v{x[0]}, 3, v{vcq}"); a(f"v_lshlrev_b32 v{x[0]}, 5, v{x[0]}")
        a(f"v_bfe_u32 v{x[1]}, v{vcq}, 2, 1"); a(f"v_lshl_add_u32 v{x[0]}, v{x[1]}, 4, v{x[0]}")
        a(f"v_and_b32 v{x[1]}, 1, v{vcq}"); a(f"v_lshl_add_u32 v{x[0]}, v{x[1]}, 3, v{x[0]}")
        a(f"v_bfe_u32 v{x[1]}, v{vcq}, 1, 1"); a(f"v_lshl_add_u32 v{x[0]}, v{x[1]}, 2, v{x[0]}")
    else:
        a(f"v_lshrrev_b32 v{x[0]}, 3, v{vcq}"); a(f"v_lshlrev_b32 v{x[0]}, 5, v{x[0]}")
        a(f"v_and_b32 v{x[1]}, 1, v{vcq}"); a(f"v_lshl_add_u32 v{x[0]}, v{x[1]}, 4, v{x[0]}")
        a(f"v_bfe_u32 v{x[1]}, v{vcq}, 1, 2"); a(f"v_lshl_add_u32 v{x[0]}, v{x[1]}, 2, v{x[0]}")
    for i in range(4):
        a(f"v_add_u32 v{x[1]}, {i}, v{x[0]}")
        a(f"v_bfe_u32 v{x[2]}, v{x[1]}, 1, 3")
        a(f"v_bfe_u32 v{x[3]}, v{x[1]}, 4, 1")
        a(f"v_xor_b32 v{x[2]}, v{x[2]}, v{x[3]}")
        a(f"v_xor_b32 v{x[2]}, v{x[2]}, v{vo}")
        a(f"v_lshlrev_b32 v{x[2]}, 4, v{x[2]}")
        a(f"v_lshl_add_u32 v{vw[i]}, v{x[1]}, 7, v{x[2]}")
        a(f"v_add_u32 v{vw[i]}, {WOFF}, v{vw[i]}")
    a(f"s_mov_b32 {sr(sK24)}, 0x4b800000")
    a(f"s_mul_i32 {sr(sWO)}, {sr(sNT)}, {16*WSZ}")
    a(f"s_lshl_b32 s{t0}, {sr(sP)}, 12")
    a(f"s_add_u32 {sr(sWO)}, {sr(sWO)}, s{t0}")
    sWS_ = 47
    sM1 = t4
    sMASK = 101
    a(f"s_lshl_b32 s{sMASK}, 1, {sr(sMT)}")
    a(f"s_xor_b32 s{sMASK}, s{sMASK}, 0xff")
    def dequant(Q, P, slot):
        RS, RZ, RA = P, P+2, P+4
        for c in range(4):
            if c & 1 == 0:
                a(f"v_lshlrev_b32 v{SP+c}, 16, v{RS+c//2}")
                a(f"v_lshlrev_b32 v{ZS+c}, 16, v{RZ+c//2}")
            else:
                a(f"v_and_b32 v{SP+c}, 0xffff0000, v{RS+c//2}")
                a(f"v_and_b32 v{ZS+c}, 0xffff0000, v{RZ+c//2}")
        for c in range(4): a(f"v_mul_f32 v{ZS+c}, -v{ZS+c}, v{SP+c}")
        for c in range(4): a(f"v_mul_f32 v{SP+c}, {sr(sK24)}, v{SP+c}")
        for i in range(8):
            if i & 1 == 0: a(f"v_lshlrev_b32 v{AF+i}, 16, v{RA+i//2}")
            else: a(f"v_and_b32 v{AF+i}, 0xffff0000, v{RA+i//2}")
        for c in range(4):
            for i in range(8):
                a(f"v_fma_mix_f32 v{T+i}, v{Q+4*i+c}, v{SP+c}, v{ZS+c} op_sel_hi:[1,0,0]")
            for i in range(8):
                a(f"v_mul_f32 v{T+i}, v{T+i}, v{AF+i}")
            for i in range(0, 8, 2):
                a(f"v_cvt_pk_bf16_f32 v{OUT+4*c+i//2}, v{T+i}, v{T+i+1}")
            a(f"ds_write_b128 v{vw[c]}, {vr(OUT+4*c,4)} offset:{slot*SLOT}")
    PB = 0
    vrb = [93, 94]
    a(f"v_add_u32 v{vrb[0]}, s{t0}, v{vWL}")
    a(f"v_add_u32 v{vrb[1]}, {SLOT}, v{vrb[0]}")
    def publish(u):
        for j in range(4):
            a(f"ds_read_b128 {vr(PB+(u*4+j)*4,4)}, v{vrb[u]} offset:{WOFF + j*1024}")
        a(f"s_add_u32 s{t1}, {sr(sG0)}, {u}")
        a(f"s_lshl_b32 s{t1}, s{t1}, 14")
        a(f"s_add_u32 s{t1}, s{t1}, {sr(sWO)}")
        for j in range(4):
            a(f"s_waitcnt lgkmcnt({3-j})")
            a(f"buffer_store_dwordx4 {vr(PB+(u*4+j)*4,4)}, v{vWL}, {sr(S_W,4)}, s{t1} offen offset:{j*1024} sc1")
    def gcalc(tau, dst):
        if tau < 2:
            a(f"s_add_u32 s{dst}, {sr(sG0)}, {tau}")
        else:
            j = tau - 1 if tau <= 8 else tau - 8
            a(f"s_add_u32 s{dst}, {sr(sMT)}, {j}")
            a(f"s_and_b32 s{dst}, s{dst}, 7")
            a(f"s_lshl_b32 s{dst}, s{dst}, 1")
            if tau >= 9: a(f"s_add_u32 s{dst}, s{dst}, 1")
    def setup(g):
        a(f"s_lshl_b32 s{sWS_}, s{g}, 14")
        a(f"s_add_u32 s{sWS_}, s{sWS_}, {sr(sWO)}")
        a(f"s_lshl_b32 s{sXS}, s{g}, 7")
        a(f"s_add_u32 s{sXS}, s{sXS}, {sr(sXO)}")
    def w_dma2():
        a(f"s_mov_b32 m0, s{sM1}")
        a("s_nop 0")
        for j in range(4):
            a(f"buffer_load_dwordx4 v{vWL}, {sr(S_W,4)}, s{sWS_} offen offset:{j*1024} sc1 lds")
    def flag_store(inc):
        a(f"v_readlane_b32 s{t1}, v{vSNAP}, {sr(sMT)}")
        a("s_nop 3")
        a(f"s_add_u32 s{t1}, s{t1}, {inc}")
        a(f"v_mov_b32 v{x[2]}, s{t1}")
        a(f"s_lshl_b32 s{t2}, {sr(sMT)}, 7")
        a(f"s_add_u32 s{t2}, s{t2}, s{sFO}")
        a(f"v_mov_b32 v{x[3]}, 0")
        a("s_mov_b64 exec, 1")
        a(f"buffer_store_dword v{x[2]}, v{x[3]}, {sr(S_W,4)}, s{t2} offen sc1")
        a("s_mov_b64 exec, -1")
    def check(level, okl):
        a(f"v_sub_u32 v{vCUR}, v{vCUR}, v{vSNAP}")
        a(f"v_cmp_le_u32 vcc, {level}, v{vCUR}")
        a("s_nop 4")
        a(f"s_and_b32 s{t3}, vcc_lo, s{sMASK}")
        a(f"s_cmp_eq_u32 s{t3}, s{sMASK}")
        a(f"s_cbranch_scc1 {okl}")
    def poll(level, tag):
        a(f"s_mov_b32 s{t2}, 0")
        a.lab(f"L_poll{tag}")
        a("s_mov_b64 exec, 0xff")
        a(f"buffer_load_dword v{vCUR}, v{vFA}, {sr(S_W,4)}, s{sFO} offen sc1")
        a("s_waitcnt vmcnt(0)")
        check(level, f"L_pok{tag}")
        a(f"s_add_u32 s{t2}, s{t2}, 1")
        a(f"s_cmp_lt_u32 s{t2}, {o.spin}")
        a(f"s_cbranch_scc0 L_pok{tag}")
        a(f"s_sleep {o.sleep}")
        a(f"s_branch L_poll{tag}")
        a.lab(f"L_pok{tag}")
        a("s_mov_b64 exec, -1")
    a("s_waitcnt vmcnt(8)")
    stamp(1)
    dequant(QA, PA, 0)
    a("s_waitcnt vmcnt(0) lgkmcnt(0)")
    a("s_barrier")
    stamp(5)
    publish(0)
    a(f"s_mov_b32 s{t0}, s{sQB}"); a(f"s_mov_b32 s{t2}, s{sPB_}"); a(f"s_mov_b32 s{t3}, s{sAB}")
    q_issue(QB_, PB_)
    a("s_waitcnt vmcnt(11)")
    a(f"v_mov_b32 v{x[1]}, {CNT}")
    a(f"v_mov_b32 v{x[2]}, 1")
    a("s_mov_b64 exec, 1")
    a(f"ds_add_rtn_u32 v{x[3]}, v{x[1]}, v{x[2]}")
    a("s_waitcnt lgkmcnt(0)")
    a("s_mov_b64 exec, -1")
    a(f"v_readfirstlane_b32 s96, v{x[3]}")
    a("s_nop 3")
    a(f"s_cmp_eq_u32 s96, 3")
    a("s_cbranch_scc0 L_nf0")
    flag_store(1)
    a.lab("L_nf0")
    stamp(6)
    for t in (1, 2):
        gcalc(t, t1); setup(t1)
        a(f"s_add_u32 s{sM0}, {sr(sXL)}, {t*SLOT}")
        x_dma()
    a("s_waitcnt vmcnt(16)")
    stamp(4)
    dequant(QB_, PB_, 1)
    a("s_waitcnt lgkmcnt(0)")
    a("s_waitcnt vmcnt(8)")
    a("s_barrier")
    poll(1, "A")
    stamp(3)
    gcalc(2, t1); setup(t1)
    a(f"s_lshl_b32 s{t0}, {sr(sP)}, 12")
    a(f"s_add_u32 s{sM1}, s{t0}, {2*SLOT + WOFF}")
    w_dma2()
    publish(1)
    gcalc(3, t1); setup(t1)
    a(f"s_add_u32 s{sM1}, s{t0}, {WOFF}")
    w_dma2()
    a(f"s_mov_b32 s{sM0}, {sr(sXL)}")
    x_dma()
    a("s_waitcnt vmcnt(16)")
    a("s_barrier")
    if o.estamp:
        a("s_memrealtime s[96:97]")
        a("s_memtime s[98:99]")
    a(f"s_mov_b32 {sr(sT)}, 4")
    a(f"s_mov_b32 s{sC}, {SLOT}")
    a.lab("L_lloop")
    a(f"s_cmp_ge_u32 {sr(sT)}, 9")
    a(f"s_cselect_b32 s{t2}, 8, 1")
    a(f"s_cselect_b32 s{t3}, 1, 0")
    a(f"s_sub_u32 s{t1}, {sr(sT)}, s{t2}")
    a(f"s_add_u32 s{t1}, s{t1}, {sr(sMT)}")
    a(f"s_and_b32 s{t1}, s{t1}, 7")
    a(f"s_lshl_b32 s{t1}, s{t1}, 1")
    a(f"s_add_u32 s{t1}, s{t1}, s{t3}")
    setup(t1)
    a(f"s_lshl_b32 s{t0}, {sr(sP)}, 12")
    a(f"s_add_u32 s{sM1}, s{t0}, s{sC}")
    a(f"s_add_u32 s{sM1}, s{sM1}, {WOFF}")
    a(f"s_add_u32 s{sM0}, {sr(sXL)}, s{sC}")
    a(f"s_lshl_b32 s{t2}, {sr(sT)}, 3")
    a(f"s_add_u32 s{t2}, s{t2}, {sr(sWV)}")
    a(f"s_cmp_eq_u32 s{t2}, {8*8+4}")
    a("s_cbranch_scc0 L_nb1")
    a("s_mov_b64 exec, 0xff")
    a(f"buffer_load_dword v{vCUR}, v{vFA}, {sr(S_W,4)}, s{sFO} offen sc1")
    a("s_mov_b64 exec, -1")
    a.lab("L_nb1")
    w_dma2()
    x_dma()
    a(f"s_add_u32 s{sC}, s{sC}, {SLOT}")
    a(f"s_cmp_eq_u32 s{sC}, {3*SLOT}")
    a(f"s_cselect_b32 s{sC}, 0, s{sC}")
    a("s_waitcnt vmcnt(12)")
    a(f"s_lshl_b32 s{t2}, {sr(sT)}, 3")
    a(f"s_add_u32 s{t2}, s{t2}, {sr(sWV)}")
    a(f"s_cmp_eq_u32 s{t2}, {8*8+4}")
    a("s_cbranch_scc0 L_nb2")
    a("s_mov_b64 exec, 0xff")
    check(2, "L_nb2x")
    poll(2, "B")
    a.lab("L_nb2x")
    a("s_mov_b64 exec, -1")
    a.lab("L_nb2")
    a(f"s_add_u32 {sr(sT)}, {sr(sT)}, 1")
    if o.estamp:
        a("s_waitcnt lgkmcnt(0)")
        a(f"s_sub_u32 s{t2}, {sr(sT)}, 3")
        a(f"s_mov_b32 m0, s{t2}")
        a("s_nop 0")
        a("v_writelane_b32 v255, s96, m0")
        a(f"s_add_u32 m0, s{t2}, 16")
        a("s_nop 0")
        a("v_writelane_b32 v255, s98, m0")
    a("s_barrier")
    if o.estamp:
        a("s_memrealtime s[96:97]")
        a("s_memtime s[98:99]")
    a(f"s_lshl_b32 s{t2}, {sr(sT)}, 3")
    a(f"s_add_u32 s{t2}, s{t2}, {sr(sWV)}")
    a(f"s_cmp_eq_u32 s{t2}, {5*8+4}")
    a("s_cbranch_scc0 L_nf2")
    flag_store(2)
    a.lab("L_nf2")
    a(f"s_cmp_lt_u32 {sr(sT)}, {NSTEP}")
    a("s_cbranch_scc1 L_lloop")
    a("s_waitcnt vmcnt(0)")
    a("s_barrier")
    if o.stamp:
        a(f"s_cmp_eq_u32 {sr(sWV)}, 4")
        a("s_cbranch_scc0 L_end")
        if o.estamp:
            a("s_waitcnt lgkmcnt(0)")
            a("v_writelane_b32 v255, s96, 14")
            a("v_writelane_b32 v255, s98, 30")
            a("s_memrealtime s[96:97]")
            a("s_memtime s[98:99]")
            a("s_waitcnt lgkmcnt(0)")
            a("v_writelane_b32 v255, s96, 15")
            a("v_writelane_b32 v255, s98, 31")
            a(f"v_writelane_b32 v255, {sr(sST+10)}, 0")
            a(f"v_writelane_b32 v255, {sr(sST+6)}, 1")
            a(f"s_lshl_b32 s{t0}, s2, 8")
            a(f"s_add_u32 s{t0}, s{t0}, {129<<20}")
            a(f"s_add_u32 s96, s82, s{t0}")
            a(f"s_addc_u32 s97, s83, 0")
            a(f"v_lshlrev_b32 v254, 2, v{vL}")
            a("global_store_dword v254, v255, s[96:97]")
        dump_stamps((1, 3, 4, 5, 6) if o.dbgp else (3, 5, 6))
    a.lab("L_end")
    a("s_endpgm")
    if o.helper:
        a.lab("L_helper")
        a(f"s_load_dwordx2 {sr(KA,2)}, s[0:1], 0")
        a("v_lshrrev_b32 v1, 6, v0")
        a("v_and_b32 v0, 63, v0")
        a(f"v_readfirstlane_b32 {sr(sWV)}, v1")
        a(f"s_sub_u32 s{t0}, s2, {NWG}")
        a(f"s_and_b32 {sr(sMT)}, s{t0}, 7")
        a(f"s_lshr_b32 s{t2}, s{t0}, 3")
        a(f"s_lshl_b32 s{t1}, {sr(sMT)}, 8")
        a(f"s_lshl_b32 s{t2}, s{t2}, 6")
        a(f"s_add_u32 s{t1}, s{t1}, s{t2}")
        a(f"s_lshl_b32 s{t3}, {sr(sWV)}, 3")
        a(f"s_add_u32 s{t1}, s{t1}, s{t3}")
        a(f"s_lshl_b32 s42, s{t1}, 11")
        a(f"s_lshl_b32 {sr(sG0)}, {sr(sMT)}, 1")
        a("v_lshrrev_b32 v3, 3, v0")
        a("v_and_b32 v4, 7, v0")
        a("v_lshlrev_b32 v4, 4, v4")
        a("v_lshl_add_u32 v3, v3, 11, v4")
        a("s_waitcnt lgkmcnt(0)")
        srd(S_X, KA, M*K*2)
        for t in range(o.hstart, NSTEP):
            if t < 2:
                a(f"s_add_u32 s{t0}, {sr(sG0)}, {t}")
            else:
                j = t - 1 if t <= 8 else t - 8
                a(f"s_add_u32 s{t0}, {sr(sMT)}, {j}"); a(f"s_and_b32 s{t0}, s{t0}, 7"); a(f"s_lshl_b32 s{t0}, s{t0}, 1")
                if t >= 9: a(f"s_add_u32 s{t0}, s{t0}, 1")
            a(f"s_lshl_b32 s{t0}, s{t0}, 7"); a(f"s_add_u32 s{t0}, s{t0}, s42")
            a(f"buffer_load_dwordx4 v[8:11], v3, {sr(S_X,4)}, s{t0} offen")
            if o.hdepth: a(f"s_waitcnt vmcnt({o.hdepth-1})")
        a("s_endpgm")
    a.raw('.section .rodata,"a"'); a.raw(".p2align 6"); a.raw(f".amdhsa_kernel {KNAME}")
    for d in ["next_free_vgpr 256", "next_free_sgpr 102", "accum_offset 256", "group_segment_fixed_size 0", "kernarg_size 64",
              "user_sgpr_count 2", "user_sgpr_kernarg_segment_ptr 1", "system_sgpr_workgroup_id_x 1"]:
        a.raw("  .amdhsa_" + d)
    a.raw(".end_amdhsa_kernel")
    return "\n".join(hdr) + "\n" + a.text()

if __name__ == "__main__":
    p = argparse.ArgumentParser()
    p.add_argument("-o", default="h.s")
    p.add_argument("--mfma", type=int, default=16)
    p.add_argument("--stamp", type=int, default=0)
    p.add_argument("--estamp", type=int, default=0)
    p.add_argument("--prio", type=int, default=0)
    p.add_argument("--rstride", type=int, default=2)
    p.add_argument("--stflags", default="nt")
    p.add_argument("--qflags", default="nt")
    p.add_argument("--xflags", default="")
    p.add_argument("--helper", type=int, default=1)
    p.add_argument("--hstart", type=int, default=0)
    p.add_argument("--spin", type=int, default=20000)
    p.add_argument("--nomfma", type=int, default=0)
    p.add_argument("--s1", type=int, default=1)
    p.add_argument("--hdepth", type=int, default=2)
    p.add_argument("--dbgp", type=int, default=0)
    p.add_argument("--flag", type=int, default=1)
    p.add_argument("--cstride", type=int, default=2)
    p.add_argument("--sleep", type=int, default=4)
    o = p.parse_args()
    open(o.o, "w").write(gen(o))
```

```python
import sys, argparse

KNAME = "standalone__weight_only_int_omniquant__prompt_kernel"
M, K, N = 2048, 1024, 3584
TM, TN, KS = 256, 128, 64
NSTEP = K // KS
NWG = (M // TM) * (N // TN)

class A:
    def __init__(s): s.l = []
    def __call__(s, x): s.l.append("    " + x)
    def lab(s, x): s.l.append(x + ":")
    def raw(s, x): s.l.append(x)
    def text(s): return "\n".join(s.l) + "\n"

def vr(b, n=1): return f"v{b}" if n == 1 else f"v[{b}:{b+n-1}]"
def sr(b, n=1): return f"s{b}" if n == 1 else f"s[{b}:{b+n-1}]"

def gen(o):
    a = A()
    SLOT = 49152
    WOFF = 32768
    WSZ = 16384
    CNT = 3 * SLOT
    LDS = CNT + 64
    M32 = (o.mfma == 32)
    S_X, S_Q, S_S, S_Z, S_A, S_O, S_W, S_D = 4, 8, 12, 16, 20, 24, 92, 96
    S_W, S_D = 88, 92
    sMT, sNT, sWV, sG0 = 28, 29, 30, 31
    sT = 32
    sXO, sXL = 33, 34
    t0, t1, t2, t3, t4 = 35, 36, 37, 38, 39
    sK24 = 40
    sP, sU = 41, 42
    sWO = 43
    sC = 44
    sFO = 100
    sST = 48
    sWS = 64
    sDBG = 66
    KA = 68
    sCY = 84
    hdr = [f"; @launch grid=({256 if o.helper else NWG},1,1) block=(512,1,1) lds={LDS}"]
    a.raw('.amdgcn_target "amdgcn-amd-amdhsa--gfx950"')
    a.raw(".text"); a.raw(f".globl {KNAME}"); a.raw(".p2align 8"); a.raw(f".type {KNAME},@function")
    a.lab(KNAME)
    def stamp(i):
        if o.stamp: a(f"s_memrealtime {sr(sST + 2*i, 2)}")
    def dbg_out(pairs):
        a("s_waitcnt lgkmcnt(0)")
        srd(S_D, KA+12, 256)
        a("s_mov_b64 exec, 1")
        a("v_mov_b32 v1, 0")
        for (idx, sg, inv) in pairs:
            if inv: a(f"s_not_b32 s{t0}, s{sg}")
            else: a(f"s_mov_b32 s{t0}, s{sg}")
            a(f"v_mov_b32 v2, s{t0}")
            a(f"buffer_atomic_umax v2, v1, {sr(S_D,4)}, 0 offen offset:{idx*4}")
            a("s_nop 1")
    def dump_stamps(idxs, extra=None):
        if o.dbgout:
            prs = []
            for i in idxs:
                prs.append((i, sST+2*i, i == 0))
                prs.append((8+i, sST+2*i, True))
            dbg_out(prs)
            return
        a("s_waitcnt lgkmcnt(0)")
        a(f"s_lshl_b32 s{t0}, s2, 6")
        a(f"s_add_u32 s{t0}, s{t0}, {128<<20}")
        a(f"s_add_u32 {sr(sWS)}, s82, s{t0}")
        a(f"s_addc_u32 {sr(sWS+1)}, s83, 0")
        a("v_mov_b32 v1, 0")
        if extra: extra()
        for i in idxs:
            a(f"v_mov_b32 v2, {sr(sST+2*i)}")
            a(f"v_mov_b32 v3, {sr(sST+2*i+1)}")
            a(f"global_store_dwordx2 v1, v[2:3], {sr(sWS,2)} offset:{i*8}")
            a("s_nop 1")
    def srd(b, p, size):
        a(f"s_mov_b32 s{b}, s{p}")
        a(f"s_and_b32 s{b+1}, s{p+1}, 0xffff")
        a(f"s_mov_b32 s{b+2}, {size}")
        a(f"s_mov_b32 s{b+3}, 0x20000")
    if o.helper:
        a("s_cmp_ge_u32 s2, 256")
        a("s_cbranch_scc1 L_end")
        a(f"s_cmp_ge_u32 s2, {NWG}")
        a("s_cbranch_scc1 L_helper")
    else:
        a(f"s_cmp_ge_u32 s2, {NWG}")
        a("s_cbranch_scc1 L_end")
    stamp(0)
    a(f"s_load_dwordx4 {sr(KA,4)}, s[0:1], 0")
    a(f"s_load_dwordx4 {sr(KA+4,4)}, s[0:1], 16")
    a(f"s_load_dwordx4 {sr(KA+8,4)}, s[0:1], 32")
    a(f"s_load_dwordx4 {sr(KA+12,4)}, s[0:1], 48")
    a("v_lshrrev_b32 v1, 6, v0")
    a("v_and_b32 v0, 63, v0")
    a(f"v_readfirstlane_b32 {sr(sWV)}, v1")
    a(f"s_and_b32 s{t0}, s2, 7")
    a(f"s_lshr_b32 s{t1}, s2, 3")
    a(f"s_mul_i32 s{t0}, s{t0}, 28")
    a(f"s_add_u32 s{t0}, s{t0}, s{t1}")
    a(f"s_lshr_b32 {sr(sNT)}, s{t0}, 3")
    a(f"s_and_b32 {sr(sMT)}, s{t0}, 7")
    a(f"s_lshl_b32 {sr(sG0)}, {sr(sMT)}, 1")
    a(f"s_and_b32 {sr(sP)}, {sr(sWV)}, 3")
    a(f"s_lshr_b32 {sr(sU)}, {sr(sWV)}, 2")
    a(f"s_xor_b32 {sr(sU)}, {sr(sU)}, 1")
    vL = 254
    a(f"v_mov_b32 v{vL}, v0")
    a(f"s_cmp_ge_u32 {sr(sWV)}, 4")
    a("s_cbranch_scc1 L_loader")

    XF = [128, 144]; WF = [160, 192]
    B = 224
    vLANE = vL
    vXA = [B+1, B+2, B+3, B+4]; vWA = [B+5, B+6, B+7, B+8]
    vT = [B+9+i for i in range(12)]
    if o.prio: a(f"s_setprio {o.prio}")
    a(f"v_mov_b32 v{vT[0]}, {CNT}")
    a(f"v_mov_b32 v{vT[1]}, 0")
    a(f"ds_write_b32 v{vT[0]}, v{vT[1]}")
    lo = vT[5]; hi = vT[6]; f = vT[7]; tt = vT[8]
    if M32:
        a(f"v_and_b32 v{lo}, 31, v{vLANE}")
        a(f"v_lshrrev_b32 v{hi}, 5, v{vLANE}")
        a(f"v_bfe_u32 v{f}, v{vLANE}, 1, 3")
        a(f"v_xor_b32 v{tt}, v{hi}, v{f}")
        a(f"v_lshlrev_b32 v{tt}, 4, v{tt}")
        a(f"v_lshl_add_u32 v{vXA[0]}, v{lo}, 7, v{tt}")
        a(f"s_lshl_b32 s{t0}, {sr(sWV)}, 13")
        a(f"v_add_u32 v{vXA[0]}, s{t0}, v{vXA[0]}")
        a(f"v_xor_b32 v{vXA[1]}, 32, v{vXA[0]}")
        a(f"v_xor_b32 v{vXA[2]}, 64, v{vXA[0]}")
        a(f"v_xor_b32 v{vXA[3]}, 96, v{vXA[0]}")
        a(f"v_bfe_u32 v{tt}, v{vLANE}, 4, 1")
        a(f"v_xor_b32 v{f}, v{f}, v{tt}")
        a(f"v_xor_b32 v{tt}, v{hi}, v{f}")
        a(f"v_lshlrev_b32 v{tt}, 4, v{tt}")
        a(f"v_lshl_add_u32 v{vWA[0]}, v{lo}, 7, v{tt}")
        a(f"v_add_u32 v{vWA[0]}, {WOFF}, v{vWA[0]}")
        a(f"v_xor_b32 v{vWA[1]}, 32, v{vWA[0]}")
        a(f"v_xor_b32 v{vWA[2]}, 64, v{vWA[0]}")
        a(f"v_xor_b32 v{vWA[3]}, 96, v{vWA[0]}")
    else:
        a(f"v_and_b32 v{lo}, 15, v{vLANE}")
        a(f"v_lshrrev_b32 v{hi}, 4, v{vLANE}")
        a(f"v_bfe_u32 v{f}, v{vLANE}, 1, 3")
        a(f"v_xor_b32 v{tt}, v{hi}, v{f}")
        a(f"v_lshlrev_b32 v{tt}, 4, v{tt}")
        a(f"v_lshl_add_u32 v{vWA[0]}, v{lo}, 7, v{tt}")
        a(f"s_lshl_b32 s{t0}, {sr(sWV)}, 13")
        a(f"v_add_u32 v{vXA[0]}, s{t0}, v{vWA[0]}")
        a(f"v_xor_b32 v{vXA[1]}, 64, v{vXA[0]}")
        a(f"v_add_u32 v{vWA[0]}, {WOFF}, v{vWA[0]}")
        a(f"v_xor_b32 v{vWA[1]}, 16, v{vWA[0]}")
        a(f"v_xor_b32 v{vWA[2]}, 64, v{vWA[0]}")
        a(f"v_xor_b32 v{vWA[3]}, 0x50, v{vWA[0]}")
    a("s_waitcnt lgkmcnt(0)")
    for i in range(128): a(f"v_mov_b32 v{i}, 0")
    for i in range(XF[1], XF[1]+16): a(f"v_mov_b32 v{i}, 0")
    for i in range(WF[1], WF[1]+32): a(f"v_mov_b32 v{i}, 0")
    a(f"s_mov_b32 {sr(sT)}, 0")
    a(f"s_mov_b32 s{sC}, {SLOT}"); a(f"s_mov_b32 s{sC+1}, {-2*SLOT & 0xffffffff}")
    a(f"s_mov_b32 s{sC+2}, 0")
    if o.stamp:
        a(f"s_memtime {sr(sCY,2)}")
    def phase(h, sread, smma, do_read=True, do_mma=True):
        reads = []
        if do_read:
            if M32:
                for ks in range(2):
                    for nb in range(4):
                        reads.append(f"ds_read_b128 {vr(WF[sread]+(ks*4+nb)*4,4)}, v{vWA[h*2+ks]} offset:{nb*4096}")
                        if nb < 2:
                            reads.append(f"ds_read_b128 {vr(XF[sread]+(ks*2+nb)*4,4)}, v{vXA[h*2+ks]} offset:{nb*4096}")
            else:
                for nb in range(8):
                    reads.append(f"ds_read_b128 {vr(WF[sread]+nb*4,4)}, v{vWA[h*2+(nb&1)]} offset:{nb*2048}")
                    if nb < 4:
                        reads.append(f"ds_read_b128 {vr(XF[sread]+nb*4,4)}, v{vXA[h]} offset:{nb*2048}")
        mm = []
        if do_mma:
            if M32:
                for ks in range(2):
                    for nb in range(4):
                        for mb in range(2):
                            c = (mb*4+nb)*16
                            mm.append(f"v_mfma_f32_32x32x16_bf16 {vr(c,16)}, {vr(WF[smma]+(ks*4+nb)*4,4)}, {vr(XF[smma]+(ks*2+mb)*4,4)}, {vr(c,16)}")
            else:
                for nb in range(8):
                    for mb in range(4):
                        c = (mb*8+nb)*4
                        mm.append(f"v_mfma_f32_16x16x32_bf16 {vr(c,4)}, {vr(WF[smma]+nb*4,4)}, {vr(XF[smma]+mb*4,4)}, {vr(c,4)}")
        ri = 0
        rstride = o.rstride if not M32 else 1
        for i, m in enumerate(mm):
            if not o.nomfma: a(m)
            if ri < len(reads) and (i % rstride == 0):
                a(reads[ri]); ri += 1
        while ri < len(reads):
            a(reads[ri]); ri += 1
    nxa = 4 if M32 else 2
    a.lab("L_cloop")
    a("s_barrier")
    phase(0, 0, 1)
    a("s_waitcnt lgkmcnt(0)")
    phase(1, 1, 0)
    a(f"s_add_u32 {sr(sT)}, {sr(sT)}, 1")
    a(f"s_add_u32 s{sC+2}, s{sC+2}, 1")
    a(f"s_cmp_eq_u32 s{sC+2}, 3")
    a(f"s_cselect_b32 s{t1}, s{sC+1}, s{sC}")
    a(f"s_cselect_b32 s{sC+2}, 0, s{sC+2}")
    a("s_waitcnt lgkmcnt(0)")
    for i in range(nxa): a(f"v_add_u32 v{vXA[i]}, s{t1}, v{vXA[i]}")
    for i in range(4): a(f"v_add_u32 v{vWA[i]}, s{t1}, v{vWA[i]}")
    a(f"s_cmp_lt_u32 {sr(sT)}, {NSTEP}")
    a("s_cbranch_scc1 L_cloop")
    phase(0, 0, 1, do_read=False)
    stamp(2)
    if o.stamp: a(f"s_memtime {sr(sCY+2,2)}")
    a("s_barrier")
    E = vT
    srd(S_O, KA+10, M*N*2)
    a(f"s_lshl_b32 s{t0}, {sr(sWV)}, 14")
    if M32:
        a(f"v_and_b32 v{E[0]}, 31, v{vLANE}")
        a(f"v_lshrrev_b32 v{E[1]}, 5, v{vLANE}")
    else:
        a(f"v_and_b32 v{E[0]}, 15, v{vLANE}")
        a(f"v_lshrrev_b32 v{E[1]}, 4, v{vLANE}")
    a(f"v_and_b32 v{E[2]}, 7, v{vLANE}")
    a(f"v_xor_b32 v{E[2]}, v{E[2]}, v{E[1]}")
    a(f"v_lshlrev_b32 v{E[2]}, 4, v{E[2]}")
    a(f"v_lshl_add_u32 v{E[3]}, v{E[0]}, 8, v{E[2]}")
    a(f"v_add_u32 v{E[3]}, s{t0}, v{E[3]}")
    a(f"v_xor_b32 v{E[4]}, 64, v{E[3]}")
    if M32:
        a(f"v_xor_b32 v{E[5]}, 32, v{E[3]}")
        a(f"v_xor_b32 v{E[6]}, 96, v{E[3]}")
    a(f"v_lshrrev_b32 v{E[7]}, 4, v{vLANE}")
    a(f"v_and_b32 v{E[8]}, 15, v{vLANE}")
    a(f"v_xor_b32 v{E[9]}, v{E[8]}, v{E[7]}")
    a(f"v_lshlrev_b32 v{E[9]}, 4, v{E[9]}")
    a(f"v_lshl_add_u32 v{E[9]}, v{E[7]}, 8, v{E[9]}")
    a(f"v_add_u32 v{E[9]}, s{t0}, v{E[9]}")
    a(f"v_xor_b32 v{E[10]}, 64, v{E[9]}")
    a(f"s_mov_b32 s{t1}, {N*2}")
    a(f"v_mul_lo_u32 v{E[11]}, s{t1}, v{E[7]}")
    a(f"v_lshl_add_u32 v{E[11]}, v{E[8]}, 4, v{E[11]}")
    a(f"s_lshl_b32 s{t0}, {sr(sMT)}, 8")
    a(f"s_lshl_b32 s{t1}, {sr(sWV)}, 6")
    a(f"s_add_u32 s{t0}, s{t0}, s{t1}")
    a(f"s_mul_i32 s{t0}, s{t0}, {N*2}")
    a(f"s_lshl_b32 s{t1}, {sr(sNT)}, 8")
    a(f"s_add_u32 s{t0}, s{t0}, s{t1}")
    a("s_nop 7")
    TP = XF[0]
    tp = 0
    def nexttmp():
        nonlocal tp
        r = TP + (tp % 24) * 4
        tp += 1
        return r
    nblk = 2 if M32 else 4
    rows_per_blk = 32 if M32 else 16
    nt_ = rows_per_blk // 4
    ldsq = []
    def lds_op(tag, txt):
        a(txt); ldsq.append(tag)
    def wait_for(tag):
        n = len(ldsq) - 1 - ldsq.index(tag)
        a(f"s_waitcnt lgkmcnt({min(n,15)})")
    def Wb(mb):
        if M32:
            for nb in range(4):
                for u in range(2):
                    c = (mb*4+nb)*16 + u*8
                    r = nexttmp()
                    for j in range(4): a(f"v_cvt_pk_bf16_f32 v{r+j}, v{c+2*j}, v{c+2*j+1}")
                    var = [E[3], E[5], E[4], E[6]][(nb & 1)*2 + u]
                    lds_op(('W', mb, nb, u), f"ds_write_b128 v{var}, {vr(r,4)} offset:{(nb>>1)*128 + mb*8192}")
        else:
            for P in range(4):
                r = nexttmp()
                for b in range(2):
                    c = (mb*8+2*P+b)*4
                    a(f"v_cvt_pk_bf16_f32 v{r+2*b}, v{c}, v{c+1}")
                    a(f"v_cvt_pk_bf16_f32 v{r+2*b+1}, v{c+2}, v{c+3}")
                var = E[3] if (P & 1) == 0 else E[4]
                lds_op(('W', mb, P), f"ds_write_b128 v{var}, {vr(r,4)} offset:{(P>>1)*128 + mb*4096}")
    def rbreg(mb, t): return mb*(64 if M32 else 32) + t*4
    def Rb(mb):
        for t in range(nt_):
            tg = mb*nt_ + t
            var = E[9] if (tg & 1) == 0 else E[10]
            lds_op(('R', mb, t), f"ds_read_b128 {vr(rbreg(mb,t),4)}, v{var} offset:{tg*1024}")
    def Sb(mb):
        for t in range(nt_):
            wait_for(('R', mb, t))
            a(f"buffer_store_dwordx4 {vr(rbreg(mb,t),4)}, v{E[11]}, {sr(S_O,4)}, s{t0} offen {o.stflags}")
            a(f"s_add_u32 s{t0}, s{t0}, {4*N*2}")
    Wb(0)
    for mb in range(nblk):
        if mb + 1 < nblk: Wb(mb+1)
        Rb(mb)
        if mb >= 1: Sb(mb-1)
    Sb(nblk-1)
    if o.stamp:
        a("s_waitcnt vmcnt(0)")
        if not o.dbgp: stamp(4)
        a(f"s_cmp_eq_u32 {sr(sWV)}, 0")
        a("s_cbranch_scc0 L_end")
        def extra():
            a(f"s_sub_u32 s{sCY+2}, s{sCY+2}, s{sCY}")
            a(f"s_subb_u32 s{sCY+3}, s{sCY+3}, s{sCY+1}")
            a(f"v_mov_b32 v2, s{sCY+2}"); a(f"v_mov_b32 v3, s{sCY+3}")
            a(f"global_store_dwordx2 v1, v[2:3], {sr(sWS,2)} offset:56"); a("s_nop 1")
        dump_stamps((0, 2) if o.dbgp else (0, 1, 2, 4), extra)
    a("s_endpgm")

    a.lab("L_loader")
    QA, QB_ = 0, 112
    PA, PB_ = 32, 144
    SP = 40; ZS = 44; AF = 48; T = 56; OUT = 64
    vq, vp, va, vo, vcq = 80, 81, 82, 83, 84
    vw = [85, 86, 87, 88]
    x = [89, 90, 91, 92]
    XV = [96+j for j in range(8)]
    vWL = 104
    vFA, vSNAP, vCUR = 105, 106, 107
    FLAGB = 8 << 20
    sXS, sM0 = 45, 46
    a(f"v_lshrrev_b32 v{x[0]}, 5, v{vL}")
    a(f"v_and_b32 v{vcq}, 31, v{vL}")
    a(f"s_lshl_b32 s{t0}, {sr(sP)}, 1")
    a(f"v_add_u32 v{vo}, s{t0}, v{x[0]}")
    a(f"s_mov_b32 s{t0}, {8*N*4}")
    a(f"v_mul_lo_u32 v{vq}, s{t0}, v{vo}")
    a(f"v_lshl_add_u32 v{vq}, v{vcq}, 4, v{vq}")
    a(f"v_lshlrev_b32 v{vp}, 3, v{vcq}")
    a(f"v_lshlrev_b32 v{va}, 4, v{vo}")
    a(f"s_mul_i32 s{t0}, {sr(sG0)}, {64*N*4}")
    a(f"s_lshl_b32 s{t1}, {sr(sNT)}, 9")
    a(f"s_add_u32 s{t0}, s{t0}, s{t1}")
    a(f"s_mul_i32 s{t2}, {sr(sG0)}, {N*2}")
    a(f"s_lshl_b32 s{t1}, {sr(sNT)}, 8")
    a(f"s_add_u32 s{t2}, s{t2}, s{t1}")
    a(f"s_lshl_b32 s{t3}, {sr(sG0)}, 7")
    a(f"v_lshrrev_b32 v{x[0]}, 3, v{vL}")
    a(f"v_and_b32 v{x[1]}, 7, v{vL}")
    a(f"v_lshrrev_b32 v{x[2]}, 1, v{x[0]}")
    a(f"v_xor_b32 v{x[1]}, v{x[1]}, v{x[2]}")
    a(f"v_lshlrev_b32 v{x[1]}, 4, v{x[1]}")
    a(f"v_lshl_add_u32 v{x[1]}, v{x[0]}, 11, v{x[1]}")
    a(f"v_xor_b32 v{x[2]}, 64, v{x[1]}")
    a(f"v_lshlrev_b32 v{vFA}, 7, v{vL}")
    a(f"s_lshl_b32 s{sFO}, {sr(sNT)}, 10")
    a(f"s_add_u32 s{sFO}, s{sFO}, {FLAGB}")
    a("s_waitcnt lgkmcnt(0)")
    srd(S_W, KA+14, FLAGB + 224*128)
    a("s_mov_b64 exec, 0xff")
    a(f"buffer_load_dword v{vSNAP}, v{vFA}, {sr(S_W,4)}, s{sFO} offen sc1")
    a("s_mov_b64 exec, -1")
    srd(S_Q, KA+2, K*N*4)
    def q_issue(Q, P):
        for i in range(8):
            a(f"buffer_load_dwordx4 {vr(Q+4*i,4)}, v{vq}, {sr(S_Q,4)}, s{t0} offen {o.qflags}")
            a(f"s_add_u32 s{t0}, s{t0}, {N*4}")
        a(f"buffer_load_dwordx2 {vr(P,2)}, v{vp}, {sr(S_S,4)}, s{t2} offen")
        a(f"buffer_load_dwordx2 {vr(P+2,2)}, v{vp}, {sr(S_Z,4)}, s{t2} offen")
        a(f"buffer_load_dwordx4 {vr(P+4,4)}, v{va}, {sr(S_A,4)}, s{t3} offen")
    srd(S_S, KA+4, 16*N*2); srd(S_Z, KA+6, 16*N*2); srd(S_A, KA+8, K*2)
    q_issue(QA, PA)
    srd(S_X, KA, M*K*2)
    for j in range(8):
        src = x[1] if j % 2 == 0 else x[2]
        a(f"v_add_u32 v{XV[j]}, {j*16384 - 1024*(j%4)}, v{src}")
    a(f"v_lshlrev_b32 v{vWL}, 4, v{vL}")
    a(f"s_lshl_b32 s{t1}, {sr(sMT)}, 8")
    a(f"s_lshl_b32 s{t4}, {sr(sP)}, 6")
    a(f"s_add_u32 s{t1}, s{t1}, s{t4}")
    a(f"s_lshl_b32 {sr(sXO)}, s{t1}, 11")
    a(f"s_lshl_b32 {sr(sXL)}, {sr(sP)}, 13")
    def x_dma():
        for j in range(8):
            if j % 4 == 0:
                a(f"s_add_u32 m0, s{sM0}, {(j//4)*4096}")
                a("s_nop 0")
            a(f"buffer_load_dwordx4 v{XV[j]}, {sr(S_X,4)}, s{sXS} offen offset:{(j%4)*1024} {o.xflags} lds")
    a(f"s_lshl_b32 s{sXS}, {sr(sG0)}, 7")
    a(f"s_add_u32 s{sXS}, s{sXS}, {sr(sXO)}")
    a(f"s_mov_b32 s{sM0}, {sr(sXL)}")
    x_dma()
    sQB, sPB_, sAB = 97, 98, 99
    a(f"s_add_u32 s{sQB}, s{t0}, {56*N*4}")
    a(f"s_add_u32 s{sPB_}, s{t2}, {N*2}")
    a(f"s_add_u32 s{sAB}, s{t3}, 128")
    if M32:
        a(f"v_lshrrev_b32 v{x[0]}, 3, v{vcq}"); a(f"v_lshlrev_b32 v{x[0]}, 5, v{x[0]}")
        a(f"v_bfe_u32 v{x[1]}, v{vcq}, 2, 1"); a(f"v_lshl_add_u32 v{x[0]}, v{x[1]}, 4, v{x[0]}")
        a(f"v_and_b32 v{x[1]}, 1, v{vcq}"); a(f"v_lshl_add_u32 v{x[0]}, v{x[1]}, 3, v{x[0]}")
        a(f"v_bfe_u32 v{x[1]}, v{vcq}, 1, 1"); a(f"v_lshl_add_u32 v{x[0]}, v{x[1]}, 2, v{x[0]}")
    else:
        a(f"v_lshrrev_b32 v{x[0]}, 3, v{vcq}"); a(f"v_lshlrev_b32 v{x[0]}, 5, v{x[0]}")
        a(f"v_and_b32 v{x[1]}, 1, v{vcq}"); a(f"v_lshl_add_u32 v{x[0]}, v{x[1]}, 4, v{x[0]}")
        a(f"v_bfe_u32 v{x[1]}, v{vcq}, 1, 2"); a(f"v_lshl_add_u32 v{x[0]}, v{x[1]}, 2, v{x[0]}")
    for i in range(4):
        a(f"v_add_u32 v{x[1]}, {i}, v{x[0]}")
        a(f"v_bfe_u32 v{x[2]}, v{x[1]}, 1, 3")
        a(f"v_bfe_u32 v{x[3]}, v{x[1]}, 4, 1")
        a(f"v_xor_b32 v{x[2]}, v{x[2]}, v{x[3]}")
        a(f"v_xor_b32 v{x[2]}, v{x[2]}, v{vo}")
        a(f"v_lshlrev_b32 v{x[2]}, 4, v{x[2]}")
        a(f"v_lshl_add_u32 v{vw[i]}, v{x[1]}, 7, v{x[2]}")
        a(f"v_add_u32 v{vw[i]}, {WOFF}, v{vw[i]}")
    a(f"s_mov_b32 {sr(sK24)}, 0x4b800000")
    a(f"s_mul_i32 {sr(sWO)}, {sr(sNT)}, {16*WSZ}")
    a(f"s_lshl_b32 s{t0}, {sr(sP)}, 12")
    a(f"s_add_u32 {sr(sWO)}, {sr(sWO)}, s{t0}")
    sWS_ = 47
    sM1 = t4
    sMASK = 101
    a(f"s_lshl_b32 s{sMASK}, 1, {sr(sMT)}")
    a(f"s_xor_b32 s{sMASK}, s{sMASK}, 0xff")
    def dequant(Q, P, slot):
        RS, RZ, RA = P, P+2, P+4
        for c in range(4):
            if c & 1 == 0:
                a(f"v_lshlrev_b32 v{SP+c}, 16, v{RS+c//2}")
                a(f"v_lshlrev_b32 v{ZS+c}, 16, v{RZ+c//2}")
            else:
                a(f"v_and_b32 v{SP+c}, 0xffff0000, v{RS+c//2}")
                a(f"v_and_b32 v{ZS+c}, 0xffff0000, v{RZ+c//2}")
        for c in range(4): a(f"v_mul_f32 v{ZS+c}, -v{ZS+c}, v{SP+c}")
        for c in range(4): a(f"v_mul_f32 v{SP+c}, {sr(sK24)}, v{SP+c}")
        for i in range(8):
            if i & 1 == 0: a(f"v_lshlrev_b32 v{AF+i}, 16, v{RA+i//2}")
            else: a(f"v_and_b32 v{AF+i}, 0xffff0000, v{RA+i//2}")
        for c in range(4):
            for i in range(8):
                a(f"v_fma_mix_f32 v{T+i}, v{Q+4*i+c}, v{SP+c}, v{ZS+c} op_sel_hi:[1,0,0]")
            for i in range(8):
                a(f"v_mul_f32 v{T+i}, v{T+i}, v{AF+i}")
            for i in range(0, 8, 2):
                a(f"v_cvt_pk_bf16_f32 v{OUT+4*c+i//2}, v{T+i}, v{T+i+1}")
            a(f"ds_write_b128 v{vw[c]}, {vr(OUT+4*c,4)} offset:{slot*SLOT}")
    PB = 0
    vrb = [93, 94]
    a(f"v_add_u32 v{vrb[0]}, s{t0}, v{vWL}")
    a(f"v_add_u32 v{vrb[1]}, {SLOT}, v{vrb[0]}")
    def publish(u):
        for j in range(4):
            a(f"ds_read_b128 {vr(PB+(u*4+j)*4,4)}, v{vrb[u]} offset:{WOFF + j*1024}")
        a(f"s_add_u32 s{t1}, {sr(sG0)}, {u}")
        a(f"s_lshl_b32 s{t1}, s{t1}, 14")
        a(f"s_add_u32 s{t1}, s{t1}, {sr(sWO)}")
        for j in range(4):
            a(f"s_waitcnt lgkmcnt({3-j})")
            a(f"buffer_store_dwordx4 {vr(PB+(u*4+j)*4,4)}, v{vWL}, {sr(S_W,4)}, s{t1} offen offset:{j*1024} sc1")
    def gcalc(tau, dst):
        if tau < 2:
            a(f"s_add_u32 s{dst}, {sr(sG0)}, {tau}")
        else:
            j = tau - 1 if tau <= 8 else tau - 8
            a(f"s_add_u32 s{dst}, {sr(sMT)}, {j}")
            a(f"s_and_b32 s{dst}, s{dst}, 7")
            a(f"s_lshl_b32 s{dst}, s{dst}, 1")
            if tau >= 9: a(f"s_add_u32 s{dst}, s{dst}, 1")
    def setup(g):
        a(f"s_lshl_b32 s{sWS_}, s{g}, 14")
        a(f"s_add_u32 s{sWS_}, s{sWS_}, {sr(sWO)}")
        a(f"s_lshl_b32 s{sXS}, s{g}, 7")
        a(f"s_add_u32 s{sXS}, s{sXS}, {sr(sXO)}")
    def w_dma2():
        a(f"s_mov_b32 m0, s{sM1}")
        a("s_nop 0")
        for j in range(4):
            a(f"buffer_load_dwordx4 v{vWL}, {sr(S_W,4)}, s{sWS_} offen offset:{j*1024} sc1 lds")
    def flag_store(inc):
        a(f"v_readlane_b32 s{t1}, v{vSNAP}, {sr(sMT)}")
        a("s_nop 3")
        a(f"s_add_u32 s{t1}, s{t1}, {inc}")
        a(f"v_mov_b32 v{x[2]}, s{t1}")
        a(f"s_lshl_b32 s{t2}, {sr(sMT)}, 7")
        a(f"s_add_u32 s{t2}, s{t2}, s{sFO}")
        a(f"v_mov_b32 v{x[3]}, 0")
        a("s_mov_b64 exec, 1")
        a(f"buffer_store_dword v{x[2]}, v{x[3]}, {sr(S_W,4)}, s{t2} offen sc1")
        a("s_mov_b64 exec, -1")
    def check(level, okl):
        a(f"v_sub_u32 v{vCUR}, v{vCUR}, v{vSNAP}")
        a(f"v_cmp_le_u32 vcc, {level}, v{vCUR}")
        a("s_nop 4")
        a(f"s_and_b32 s{t3}, vcc_lo, s{sMASK}")
        a(f"s_cmp_eq_u32 s{t3}, s{sMASK}")
        a(f"s_cbranch_scc1 {okl}")
    def poll(level, tag):
        a(f"s_mov_b32 s{t2}, 0")
        a.lab(f"L_poll{tag}")
        a("s_mov_b64 exec, 0xff")
        a(f"buffer_load_dword v{vCUR}, v{vFA}, {sr(S_W,4)}, s{sFO} offen sc1")
        a("s_waitcnt vmcnt(0)")
        check(level, f"L_pok{tag}")
        a(f"s_add_u32 s{t2}, s{t2}, 1")
        a(f"s_cmp_lt_u32 s{t2}, {o.spin}")
        a(f"s_cbranch_scc0 L_pok{tag}")
        a(f"s_sleep {o.sleep}")
        a(f"s_branch L_poll{tag}")
        a.lab(f"L_pok{tag}")
        a("s_mov_b64 exec, -1")
    a("s_waitcnt vmcnt(8)")
    stamp(1)
    dequant(QA, PA, 0)
    a("s_waitcnt vmcnt(0) lgkmcnt(0)")
    a("s_barrier")
    stamp(5)
    publish(0)
    a(f"s_mov_b32 s{t0}, s{sQB}"); a(f"s_mov_b32 s{t2}, s{sPB_}"); a(f"s_mov_b32 s{t3}, s{sAB}")
    q_issue(QB_, PB_)
    a("s_waitcnt vmcnt(11)")
    a(f"v_mov_b32 v{x[1]}, {CNT}")
    a(f"v_mov_b32 v{x[2]}, 1")
    a("s_mov_b64 exec, 1")
    a(f"ds_add_rtn_u32 v{x[3]}, v{x[1]}, v{x[2]}")
    a("s_waitcnt lgkmcnt(0)")
    a("s_mov_b64 exec, -1")
    a(f"v_readfirstlane_b32 s96, v{x[3]}")
    a("s_nop 3")
    a(f"s_cmp_eq_u32 s96, 3")
    a("s_cbranch_scc0 L_nf0")
    flag_store(1)
    a.lab("L_nf0")
    stamp(6)
    for t in (1, 2):
        gcalc(t, t1); setup(t1)
        a(f"s_add_u32 s{sM0}, {sr(sXL)}, {t*SLOT}")
        x_dma()
    a("s_waitcnt vmcnt(16)")
    stamp(4)
    dequant(QB_, PB_, 1)
    a("s_waitcnt lgkmcnt(0)")
    a("s_waitcnt vmcnt(8)")
    a("s_barrier")
    poll(1, "A")
    stamp(3)
    gcalc(2, t1); setup(t1)
    a(f"s_lshl_b32 s{t0}, {sr(sP)}, 12")
    a(f"s_add_u32 s{sM1}, s{t0}, {2*SLOT + WOFF}")
    w_dma2()
    publish(1)
    gcalc(3, t1); setup(t1)
    a(f"s_add_u32 s{sM1}, s{t0}, {WOFF}")
    w_dma2()
    a(f"s_mov_b32 s{sM0}, {sr(sXL)}")
    x_dma()
    a("s_waitcnt vmcnt(16)")
    a("s_barrier")
    if o.estamp:
        a("s_memrealtime s[96:97]")
        a("s_memtime s[98:99]")
    a(f"s_mov_b32 {sr(sT)}, 4")
    a(f"s_mov_b32 s{sC}, {SLOT}")
    a.lab("L_lloop")
    a(f"s_cmp_ge_u32 {sr(sT)}, 9")
    a(f"s_cselect_b32 s{t2}, 8, 1")
    a(f"s_cselect_b32 s{t3}, 1, 0")
    a(f"s_sub_u32 s{t1}, {sr(sT)}, s{t2}")
    a(f"s_add_u32 s{t1}, s{t1}, {sr(sMT)}")
    a(f"s_and_b32 s{t1}, s{t1}, 7")
    a(f"s_lshl_b32 s{t1}, s{t1}, 1")
    a(f"s_add_u32 s{t1}, s{t1}, s{t3}")
    setup(t1)
    a(f"s_lshl_b32 s{t0}, {sr(sP)}, 12")
    a(f"s_add_u32 s{sM1}, s{t0}, s{sC}")
    a(f"s_add_u32 s{sM1}, s{sM1}, {WOFF}")
    a(f"s_add_u32 s{sM0}, {sr(sXL)}, s{sC}")
    a(f"s_lshl_b32 s{t2}, {sr(sT)}, 3")
    a(f"s_add_u32 s{t2}, s{t2}, {sr(sWV)}")
    a(f"s_cmp_eq_u32 s{t2}, {8*8+4}")
    a("s_cbranch_scc0 L_nb1")
    a("s_mov_b64 exec, 0xff")
    a(f"buffer_load_dword v{vCUR}, v{vFA}, {sr(S_W,4)}, s{sFO} offen sc1")
    a("s_mov_b64 exec, -1")
    a.lab("L_nb1")
    w_dma2()
    x_dma()
    a(f"s_add_u32 s{sC}, s{sC}, {SLOT}")
    a(f"s_cmp_eq_u32 s{sC}, {3*SLOT}")
    a(f"s_cselect_b32 s{sC}, 0, s{sC}")
    a("s_waitcnt vmcnt(12)")
    a(f"s_lshl_b32 s{t2}, {sr(sT)}, 3")
    a(f"s_add_u32 s{t2}, s{t2}, {sr(sWV)}")
    a(f"s_cmp_eq_u32 s{t2}, {8*8+4}")
    a("s_cbranch_scc0 L_nb2")
    a("s_mov_b64 exec, 0xff")
    check(2, "L_nb2x")
    poll(2, "B")
    a.lab("L_nb2x")
    a("s_mov_b64 exec, -1")
    a.lab("L_nb2")
    a(f"s_add_u32 {sr(sT)}, {sr(sT)}, 1")
    if o.estamp:
        a("s_waitcnt lgkmcnt(0)")
        a(f"s_sub_u32 s{t2}, {sr(sT)}, 3")
        a(f"s_mov_b32 m0, s{t2}")
        a("s_nop 0")
        a("v_writelane_b32 v255, s96, m0")
        a(f"s_add_u32 m0, s{t2}, 16")
        a("s_nop 0")
        a("v_writelane_b32 v255, s98, m0")
    a("s_barrier")
    if o.estamp:
        a("s_memrealtime s[96:97]")
        a("s_memtime s[98:99]")
    a(f"s_lshl_b32 s{t2}, {sr(sT)}, 3")
    a(f"s_add_u32 s{t2}, s{t2}, {sr(sWV)}")
    a(f"s_cmp_eq_u32 s{t2}, {5*8+4}")
    a("s_cbranch_scc0 L_nf2")
    flag_store(2)
    a.lab("L_nf2")
    a(f"s_cmp_lt_u32 {sr(sT)}, {NSTEP}")
    a("s_cbranch_scc1 L_lloop")
    a("s_waitcnt vmcnt(0)")
    a("s_barrier")
    if o.stamp:
        a(f"s_cmp_eq_u32 {sr(sWV)}, 4")
        a("s_cbranch_scc0 L_end")
        if o.estamp:
            a("s_waitcnt lgkmcnt(0)")
            a("v_writelane_b32 v255, s96, 14")
            a("v_writelane_b32 v255, s98, 30")
            a("s_memrealtime s[96:97]")
            a("s_memtime s[98:99]")
            a("s_waitcnt lgkmcnt(0)")
            a("v_writelane_b32 v255, s96, 15")
            a("v_writelane_b32 v255, s98, 31")
            a(f"v_writelane_b32 v255, {sr(sST+10)}, 0")
            a(f"v_writelane_b32 v255, {sr(sST+6)}, 1")
            a(f"s_lshl_b32 s{t0}, s2, 8")
            a(f"s_add_u32 s{t0}, s{t0}, {129<<20}")
            a(f"s_add_u32 s96, s82, s{t0}")
            a(f"s_addc_u32 s97, s83, 0")
            a(f"v_lshlrev_b32 v254, 2, v{vL}")
            a("global_store_dword v254, v255, s[96:97]")
        dump_stamps((1, 3, 4, 5, 6) if o.dbgp else (3, 5, 6))
    a.lab("L_end")
    a("s_endpgm")
    if o.helper:
        a.lab("L_helper")
        a(f"s_load_dwordx2 {sr(KA,2)}, s[0:1], 0")
        a("v_lshrrev_b32 v1, 6, v0")
        a("v_and_b32 v0, 63, v0")
        a(f"v_readfirstlane_b32 {sr(sWV)}, v1")
        a(f"s_sub_u32 s{t0}, s2, {NWG}")
        a(f"s_and_b32 {sr(sMT)}, s{t0}, 7")
        a(f"s_lshr_b32 s{t2}, s{t0}, 3")
        a(f"s_lshl_b32 s{t1}, {sr(sMT)}, 8")
        a(f"s_lshl_b32 s{t2}, s{t2}, 6")
        a(f"s_add_u32 s{t1}, s{t1}, s{t2}")
        a(f"s_lshl_b32 s{t3}, {sr(sWV)}, 3")
        a(f"s_add_u32 s{t1}, s{t1}, s{t3}")
        a(f"s_lshl_b32 s42, s{t1}, 11")
        a(f"s_lshl_b32 {sr(sG0)}, {sr(sMT)}, 1")
        a("v_lshrrev_b32 v3, 3, v0")
        a("v_and_b32 v4, 7, v0")
        a("v_lshlrev_b32 v4, 4, v4")
        a("v_lshl_add_u32 v3, v3, 11, v4")
        a("s_waitcnt lgkmcnt(0)")
        srd(S_X, KA, M*K*2)
        for t in range(o.hstart, NSTEP):
            if t < 2:
                a(f"s_add_u32 s{t0}, {sr(sG0)}, {t}")
            else:
                j = t - 1 if t <= 8 else t - 8
                a(f"s_add_u32 s{t0}, {sr(sMT)}, {j}"); a(f"s_and_b32 s{t0}, s{t0}, 7"); a(f"s_lshl_b32 s{t0}, s{t0}, 1")
                if t >= 9: a(f"s_add_u32 s{t0}, s{t0}, 1")
            a(f"s_lshl_b32 s{t0}, s{t0}, 7"); a(f"s_add_u32 s{t0}, s{t0}, s42")
            a(f"buffer_load_dwordx4 v[8:11], v3, {sr(S_X,4)}, s{t0} offen")
            if o.hdepth: a(f"s_waitcnt vmcnt({o.hdepth-1})")
        a("s_endpgm")
    a.raw('.section .rodata,"a"'); a.raw(".p2align 6"); a.raw(f".amdhsa_kernel {KNAME}")
    for d in ["next_free_vgpr 256", "next_free_sgpr 102", "accum_offset 256", "group_segment_fixed_size 0", "kernarg_size 64",
              "user_sgpr_count 2", "user_sgpr_kernarg_segment_ptr 1", "system_sgpr_workgroup_id_x 1"]:
        a.raw("  .amdhsa_" + d)
    a.raw(".end_amdhsa_kernel")
    return "\n".join(hdr) + "\n" + a.text()

if __name__ == "__main__":
    p = argparse.ArgumentParser()
    p.add_argument("-o", default="h.s")
    p.add_argument("--mfma", type=int, default=16)
    p.add_argument("--stamp", type=int, default=0)
    p.add_argument("--estamp", type=int, default=0)
    p.add_argument("--prio", type=int, default=0)
    p.add_argument("--rstride", type=int, default=2)
    p.add_argument("--stflags", default="nt")
    p.add_argument("--qflags", default="nt")
    p.add_argument("--xflags", default="")
    p.add_argument("--helper", type=int, default=1)
    p.add_argument("--hstart", type=int, default=0)
    p.add_argument("--spin", type=int, default=20000)
    p.add_argument("--nomfma", type=int, default=0)
    p.add_argument("--dbgout", type=int, default=0)
    p.add_argument("--s1", type=int, default=1)
    p.add_argument("--hdepth", type=int, default=2)
    p.add_argument("--dbgp", type=int, default=0)
    p.add_argument("--flag", type=int, default=1)
    p.add_argument("--cstride", type=int, default=2)
    p.add_argument("--sleep", type=int, default=4)
    o = p.parse_args()
    open(o.o, "w").write(gen(o))
```

```python
import sys, argparse

KNAME = "standalone__weight_only_int_omniquant__prompt_kernel"
M, K, N = 2048, 1024, 3584
TM, TN, KS = 256, 128, 64
NSTEP = K // KS
NWG = (M // TM) * (N // TN)

class A:
    def __init__(s): s.l = []
    def __call__(s, x): s.l.append("    " + x)
    def lab(s, x): s.l.append(x + ":")
    def raw(s, x): s.l.append(x)
    def text(s): return "\n".join(s.l) + "\n"

def vr(b, n=1): return f"v{b}" if n == 1 else f"v[{b}:{b+n-1}]"
def sr(b, n=1): return f"s{b}" if n == 1 else f"s[{b}:{b+n-1}]"

def gen(o):
    a = A()
    SLOT = 49152
    WOFF = 32768
    WSZ = 16384
    STG = SLOT + WOFF
    CNT = 3 * SLOT
    LDS = CNT + 64
    M32 = (o.mfma == 32)
    S_X, S_Q, S_S, S_Z, S_A, S_O, S_W, S_D = 4, 8, 12, 16, 20, 24, 92, 96
    S_W, S_D = 88, 92
    sMT, sNT, sWV, sG0 = 28, 29, 30, 31
    sT = 32
    sXO, sXL = 33, 34
    t0, t1, t2, t3, t4 = 35, 36, 37, 38, 39
    sK24 = 40
    sP, sU = 41, 42
    sWO = 43
    sC = 44
    sFO = 100
    sST = 48
    sWS = 64
    sDBG = 66
    KA = 68
    sCY = 84
    hdr = [f"; @launch grid=({256 if o.helper else NWG},1,1) block=(512,1,1) lds={LDS}"]
    a.raw('.amdgcn_target "amdgcn-amd-amdhsa--gfx950"')
    a.raw(".text"); a.raw(f".globl {KNAME}"); a.raw(".p2align 8"); a.raw(f".type {KNAME},@function")
    a.lab(KNAME)
    def stamp(i):
        if o.stamp: a(f"s_memrealtime {sr(sST + 2*i, 2)}")
    def dbg_out(pairs):
        a("s_waitcnt lgkmcnt(0)")
        srd(S_D, KA+12, 256)
        a("s_mov_b64 exec, 1")
        a("v_mov_b32 v1, 0")
        for (idx, sg, inv) in pairs:
            if inv: a(f"s_not_b32 s{t0}, s{sg}")
            else: a(f"s_mov_b32 s{t0}, s{sg}")
            a(f"v_mov_b32 v2, s{t0}")
            a(f"buffer_atomic_umax v2, v1, {sr(S_D,4)}, 0 offen offset:{idx*4}")
            a("s_nop 1")
    def dump_stamps(idxs, extra=None):
        if o.dbgout:
            prs = []
            for i in idxs:
                prs.append((i, sST+2*i, i == 0))
                prs.append((8+i, sST+2*i, True))
            dbg_out(prs)
            return
        a("s_waitcnt lgkmcnt(0)")
        a(f"s_lshl_b32 s{t0}, s2, 6")
        a(f"s_add_u32 s{t0}, s{t0}, {128<<20}")
        a(f"s_add_u32 {sr(sWS)}, s82, s{t0}")
        a(f"s_addc_u32 {sr(sWS+1)}, s83, 0")
        a("v_mov_b32 v1, 0")
        if extra: extra()
        for i in idxs:
            a(f"v_mov_b32 v2, {sr(sST+2*i)}")
            a(f"v_mov_b32 v3, {sr(sST+2*i+1)}")
            a(f"global_store_dwordx2 v1, v[2:3], {sr(sWS,2)} offset:{i*8}")
            a("s_nop 1")
    def srd(b, p, size):
        a(f"s_mov_b32 s{b}, s{p}")
        a(f"s_and_b32 s{b+1}, s{p+1}, 0xffff")
        a(f"s_mov_b32 s{b+2}, {size}")
        a(f"s_mov_b32 s{b+3}, 0x20000")
    if o.helper:
        a("s_cmp_ge_u32 s2, 256")
        a("s_cbranch_scc1 L_end")
        a(f"s_cmp_ge_u32 s2, {NWG}")
        a("s_cbranch_scc1 L_helper")
    else:
        a(f"s_cmp_ge_u32 s2, {NWG}")
        a("s_cbranch_scc1 L_end")
    stamp(0)
    a(f"s_load_dwordx4 {sr(KA,4)}, s[0:1], 0")
    a(f"s_load_dwordx4 {sr(KA+4,4)}, s[0:1], 16")
    a(f"s_load_dwordx4 {sr(KA+8,4)}, s[0:1], 32")
    a(f"s_load_dwordx4 {sr(KA+12,4)}, s[0:1], 48")
    a("v_lshrrev_b32 v1, 6, v0")
    a("v_and_b32 v0, 63, v0")
    a(f"v_readfirstlane_b32 {sr(sWV)}, v1")
    a(f"s_and_b32 s{t0}, s2, 7")
    a(f"s_lshr_b32 s{t1}, s2, 3")
    a(f"s_mul_i32 s{t0}, s{t0}, 28")
    a(f"s_add_u32 s{t0}, s{t0}, s{t1}")
    a(f"s_lshr_b32 {sr(sNT)}, s{t0}, 3")
    a(f"s_and_b32 {sr(sMT)}, s{t0}, 7")
    a(f"s_lshl_b32 {sr(sG0)}, {sr(sMT)}, 1")
    a(f"s_and_b32 {sr(sP)}, {sr(sWV)}, 3")
    a(f"s_lshr_b32 {sr(sU)}, {sr(sWV)}, 2")
    a(f"s_xor_b32 {sr(sU)}, {sr(sU)}, 1")
    vL = 254
    a(f"v_mov_b32 v{vL}, v0")
    a(f"s_cmp_ge_u32 {sr(sWV)}, 4")
    a("s_cbranch_scc1 L_loader")

    XF = [128, 144]; WF = [160, 192]
    B = 224
    vLANE = vL
    vXA = [B+1, B+2, B+3, B+4]; vWA = [B+5, B+6, B+7, B+8]
    vT = [B+9+i for i in range(12)]
    if o.prio: a(f"s_setprio {o.prio}")
    a(f"v_mov_b32 v{vT[0]}, {CNT}")
    a(f"v_mov_b32 v{vT[1]}, 0")
    a(f"ds_write_b32 v{vT[0]}, v{vT[1]}")
    lo = vT[5]; hi = vT[6]; f = vT[7]; tt = vT[8]
    if M32:
        a(f"v_and_b32 v{lo}, 31, v{vLANE}")
        a(f"v_lshrrev_b32 v{hi}, 5, v{vLANE}")
        a(f"v_bfe_u32 v{f}, v{vLANE}, 1, 3")
        a(f"v_xor_b32 v{tt}, v{hi}, v{f}")
        a(f"v_lshlrev_b32 v{tt}, 4, v{tt}")
        a(f"v_lshl_add_u32 v{vXA[0]}, v{lo}, 7, v{tt}")
        a(f"s_lshl_b32 s{t0}, {sr(sWV)}, 13")
        a(f"v_add_u32 v{vXA[0]}, s{t0}, v{vXA[0]}")
        a(f"v_xor_b32 v{vXA[1]}, 32, v{vXA[0]}")
        a(f"v_xor_b32 v{vXA[2]}, 64, v{vXA[0]}")
        a(f"v_xor_b32 v{vXA[3]}, 96, v{vXA[0]}")
        a(f"v_bfe_u32 v{tt}, v{vLANE}, 4, 1")
        a(f"v_xor_b32 v{f}, v{f}, v{tt}")
        a(f"v_xor_b32 v{tt}, v{hi}, v{f}")
        a(f"v_lshlrev_b32 v{tt}, 4, v{tt}")
        a(f"v_lshl_add_u32 v{vWA[0]}, v{lo}, 7, v{tt}")
        a(f"v_add_u32 v{vWA[0]}, {WOFF}, v{vWA[0]}")
        a(f"v_xor_b32 v{vWA[1]}, 32, v{vWA[0]}")
        a(f"v_xor_b32 v{vWA[2]}, 64, v{vWA[0]}")
        a(f"v_xor_b32 v{vWA[3]}, 96, v{vWA[0]}")
    else:
        a(f"v_and_b32 v{lo}, 15, v{vLANE}")
        a(f"v_lshrrev_b32 v{hi}, 4, v{vLANE}")
        a(f"v_bfe_u32 v{f}, v{vLANE}, 1, 3")
        a(f"v_xor_b32 v{tt}, v{hi}, v{f}")
        a(f"v_lshlrev_b32 v{tt}, 4, v{tt}")
        a(f"v_lshl_add_u32 v{vWA[0]}, v{lo}, 7, v{tt}")
        a(f"s_lshl_b32 s{t0}, {sr(sWV)}, 13")
        a(f"v_add_u32 v{vXA[0]}, s{t0}, v{vWA[0]}")
        a(f"v_xor_b32 v{vXA[1]}, 64, v{vXA[0]}")
        a(f"v_add_u32 v{vWA[0]}, {WOFF}, v{vWA[0]}")
        a(f"v_xor_b32 v{vWA[1]}, 16, v{vWA[0]}")
        a(f"v_xor_b32 v{vWA[2]}, 64, v{vWA[0]}")
        a(f"v_xor_b32 v{vWA[3]}, 0x50, v{vWA[0]}")
    a("s_waitcnt lgkmcnt(0)")
    sOO = 42
    vONE, vZERO = 245, 246
    a(f"v_mov_b32 v{vONE}, 1")
    a(f"v_mov_b32 v{vZERO}, 0")
    srd(S_D, KA+12, 256)
    E = vT
    srd(S_O, KA+10, M*N*2)
    a(f"s_lshl_b32 s{t0}, {sr(sWV)}, 14")
    a(f"s_add_u32 s{t0}, s{t0}, {SLOT}")
    if M32:
        a(f"v_and_b32 v{E[0]}, 31, v{vLANE}")
        a(f"v_lshrrev_b32 v{E[1]}, 5, v{vLANE}")
    else:
        a(f"v_and_b32 v{E[0]}, 15, v{vLANE}")
        a(f"v_lshrrev_b32 v{E[1]}, 4, v{vLANE}")
    a(f"v_and_b32 v{E[2]}, 7, v{vLANE}")
    a(f"v_xor_b32 v{E[2]}, v{E[2]}, v{E[1]}")
    a(f"v_lshlrev_b32 v{E[2]}, 4, v{E[2]}")
    a(f"v_lshl_add_u32 v{E[3]}, v{E[0]}, 8, v{E[2]}")
    a(f"v_add_u32 v{E[3]}, s{t0}, v{E[3]}")
    a(f"v_xor_b32 v{E[4]}, 64, v{E[3]}")
    if M32:
        a(f"v_xor_b32 v{E[5]}, 32, v{E[3]}")
        a(f"v_xor_b32 v{E[6]}, 96, v{E[3]}")
    a(f"v_lshrrev_b32 v{E[7]}, 4, v{vLANE}")
    a(f"v_and_b32 v{E[8]}, 15, v{vLANE}")
    a(f"v_xor_b32 v{E[9]}, v{E[8]}, v{E[7]}")
    a(f"v_lshlrev_b32 v{E[9]}, 4, v{E[9]}")
    a(f"v_lshl_add_u32 v{E[9]}, v{E[7]}, 8, v{E[9]}")
    a(f"v_add_u32 v{E[9]}, s{t0}, v{E[9]}")
    a(f"v_xor_b32 v{E[10]}, 64, v{E[9]}")
    a(f"s_mov_b32 s{t1}, {N*2}")
    a(f"v_mul_lo_u32 v{E[11]}, s{t1}, v{E[7]}")
    a(f"v_lshl_add_u32 v{E[11]}, v{E[8]}, 4, v{E[11]}")
    a(f"s_lshl_b32 s{t0}, {sr(sMT)}, 8")
    a(f"s_lshl_b32 s{t1}, {sr(sWV)}, 6")
    a(f"s_add_u32 s{t0}, s{t0}, s{t1}")
    a(f"s_mul_i32 s{t0}, s{t0}, {N*2}")
    a(f"s_lshl_b32 s{t1}, {sr(sNT)}, 8")
    a(f"s_add_u32 s{sOO}, s{t0}, s{t1}")
    for i in range(128): a(f"v_mov_b32 v{i}, 0")
    for i in range(XF[1], XF[1]+16): a(f"v_mov_b32 v{i}, 0")
    for i in range(WF[1], WF[1]+32): a(f"v_mov_b32 v{i}, 0")
    a(f"s_mov_b32 {sr(sT)}, 0")
    a(f"s_mov_b32 s{sC}, {SLOT}"); a(f"s_mov_b32 s{sC+1}, {-2*SLOT & 0xffffffff}")
    a(f"s_mov_b32 s{sC+2}, 0")
    if o.stamp:
        a(f"s_memtime {sr(sCY,2)}")
    def phase(h, sread, smma, do_read=True, do_mma=True):
        reads = []
        if do_read:
            if M32:
                for ks in range(2):
                    for nb in range(4):
                        reads.append(f"ds_read_b128 {vr(WF[sread]+(ks*4+nb)*4,4)}, v{vWA[h*2+ks]} offset:{nb*4096}")
                        if nb < 2:
                            reads.append(f"ds_read_b128 {vr(XF[sread]+(ks*2+nb)*4,4)}, v{vXA[h*2+ks]} offset:{nb*4096}")
            else:
                for nb in range(8):
                    reads.append(f"ds_read_b128 {vr(WF[sread]+nb*4,4)}, v{vWA[h*2+(nb&1)]} offset:{nb*2048}")
                    if nb < 4:
                        reads.append(f"ds_read_b128 {vr(XF[sread]+nb*4,4)}, v{vXA[h]} offset:{nb*2048}")
        mm = []
        if do_mma:
            if M32:
                for ks in range(2):
                    for nb in range(4):
                        for mb in range(2):
                            c = (mb*4+nb)*16
                            mm.append(f"v_mfma_f32_32x32x16_bf16 {vr(c,16)}, {vr(WF[smma]+(ks*4+nb)*4,4)}, {vr(XF[smma]+(ks*2+mb)*4,4)}, {vr(c,16)}")
            else:
                for nb in range(8):
                    for mb in range(4):
                        c = (mb*8+nb)*4
                        mm.append(f"v_mfma_f32_16x16x32_bf16 {vr(c,4)}, {vr(WF[smma]+nb*4,4)}, {vr(XF[smma]+mb*4,4)}, {vr(c,4)}")
        ri = 0
        rstride = o.rstride if not M32 else 1
        for i, m in enumerate(mm):
            if not o.nomfma: a(m)
            if ri < len(reads) and (i % rstride == 0):
                a(reads[ri]); ri += 1
        while ri < len(reads):
            a(reads[ri]); ri += 1
    nxa = 4 if M32 else 2
    a.lab("L_cloop")
    a("s_barrier")
    phase(0, 0, 1)
    a("s_waitcnt lgkmcnt(0)")
    phase(1, 1, 0)
    a(f"s_add_u32 {sr(sT)}, {sr(sT)}, 1")
    a(f"s_add_u32 s{sC+2}, s{sC+2}, 1")
    a(f"s_cmp_eq_u32 s{sC+2}, 3")
    a(f"s_cselect_b32 s{t1}, s{sC+1}, s{sC}")
    a(f"s_cselect_b32 s{sC+2}, 0, s{sC+2}")
    a("s_waitcnt lgkmcnt(0)")
    for i in range(nxa): a(f"v_add_u32 v{vXA[i]}, s{t1}, v{vXA[i]}")
    for i in range(4): a(f"v_add_u32 v{vWA[i]}, s{t1}, v{vWA[i]}")
    a(f"s_lshl_b32 s{t3}, {sr(sT)}, 3")
    a(f"s_add_u32 s{t3}, s{t3}, {sr(sWV)}")
    a(f"s_cmp_eq_u32 s{t3}, 48")
    a("s_cbranch_scc0 L_nofin")
    a(f"s_lshl_b32 s{t3}, {sr(sNT)}, 3")
    a(f"s_add_u32 s{t3}, s{t3}, {sr(sMT)}")
    a("s_mov_b64 exec, 1")
    a(f"buffer_store_byte v{vONE}, v{vZERO}, {sr(S_D,4)}, s{t3} offen sc1")
    a("s_mov_b64 exec, -1")
    a.lab("L_nofin")
    a(f"s_cmp_lt_u32 {sr(sT)}, {NSTEP}")
    a("s_cbranch_scc1 L_cloop")
    assert not M32
    TPL = [128+4*i for i in range(4)] + [160+4*i for i in range(8)]
    tp = 0
    def nexttmp():
        nonlocal tp
        r = TPL[tp % len(TPL)]
        tp += 1
        return r
    ldsq = []
    def Ml(mb):
        return [f"v_mfma_f32_16x16x32_bf16 {vr((mb*8+nb)*4,4)}, {vr(WF[1]+nb*4,4)}, {vr(XF[1]+mb*4,4)}, {vr((mb*8+nb)*4,4)}" for nb in range(8)]
    def Wl(mb):
        out = []
        for P in range(4):
            r = nexttmp()
            for b in range(2):
                c = (mb*8+2*P+b)*4
                out.append((None, f"v_cvt_pk_bf16_f32 v{r+2*b}, v{c}, v{c+1}"))
                out.append((None, f"v_cvt_pk_bf16_f32 v{r+2*b+1}, v{c+2}, v{c+3}"))
            var = E[3] if (P & 1) == 0 else E[4]
            out.append((('W', mb, P), f"ds_write_b128 v{var}, {vr(r,4)} offset:{(P>>1)*128 + mb*4096}"))
        return out
    def Rl(mb):
        out = []
        for t in range(4):
            tg = mb*4 + t
            var = E[9] if (tg & 1) == 0 else E[10]
            out.append((('R', mb, t), f"ds_read_b128 {vr(mb*32+t*4,4)}, v{var} offset:{tg*1024}"))
        return out
    def emit(lst):
        for tag, txt in lst:
            a(txt)
            if tag: ldsq.append(tag)
    def mix(mm, lst):
        lst = list(lst); n = len(mm)
        per = (len(lst) + n - 1) // n
        for m in mm:
            if not o.nomfma: a(m)
            emit(lst[:per]); lst = lst[per:]
        emit(lst)
    def Sb(mb):
        for t in range(4):
            n = len(ldsq) - 1 - ldsq.index(('R', mb, t))
            a(f"s_waitcnt lgkmcnt({min(n,15)})")
            a(f"buffer_store_dwordx4 {vr(mb*32+t*4,4)}, v{E[11]}, {sr(S_O,4)}, s{sOO} offen {o.stflags}")
            a(f"s_add_u32 s{sOO}, s{sOO}, {4*N*2}")
    for m in Ml(0) + Ml(1):
        if not o.nomfma: a(m)
    mix(Ml(2), Wl(0))
    mix(Ml(3), Wl(1) + Rl(0))
    stamp(2)
    if o.stamp: a(f"s_memtime {sr(sCY+2,2)}")
    emit(Wl(2)); emit(Rl(1)); Sb(0)
    emit(Wl(3)); emit(Rl(2)); Sb(1)
    emit(Rl(3)); Sb(2); Sb(3)
    if o.stamp:
        a("s_waitcnt vmcnt(0)")
        stamp(4)
        a(f"s_cmp_eq_u32 {sr(sWV)}, 0")
        a("s_cbranch_scc0 L_end")
        def extra():
            a(f"s_sub_u32 s{sCY+2}, s{sCY+2}, s{sCY}")
            a(f"s_subb_u32 s{sCY+3}, s{sCY+3}, s{sCY+1}")
            a(f"v_mov_b32 v2, s{sCY+2}"); a(f"v_mov_b32 v3, s{sCY+3}")
            a(f"global_store_dwordx2 v1, v[2:3], {sr(sWS,2)} offset:56"); a("s_nop 1")
        dump_stamps((0, 2, 4), extra)
    a("s_endpgm")

    a.lab("L_loader")
    QA, QB_ = 0, 112
    PA, PB_ = 32, 144
    SP = 40; ZS = 44; AF = 48; T = 56; OUT = 64
    vq, vp, va, vo, vcq = 80, 81, 82, 83, 84
    vw = [85, 86, 87, 88]
    x = [89, 90, 91, 92]
    XV = [96+j for j in range(8)]
    vWL = 104
    vFA, vSNAP, vCUR = 105, 106, 107
    FLAGB = 8 << 20
    sXS, sM0 = 45, 46
    a(f"v_lshrrev_b32 v{x[0]}, 5, v{vL}")
    a(f"v_and_b32 v{vcq}, 31, v{vL}")
    a(f"s_lshl_b32 s{t0}, {sr(sP)}, 1")
    a(f"v_add_u32 v{vo}, s{t0}, v{x[0]}")
    a(f"s_mov_b32 s{t0}, {8*N*4}")
    a(f"v_mul_lo_u32 v{vq}, s{t0}, v{vo}")
    a(f"v_lshl_add_u32 v{vq}, v{vcq}, 4, v{vq}")
    a(f"v_lshlrev_b32 v{vp}, 3, v{vcq}")
    a(f"v_lshlrev_b32 v{va}, 4, v{vo}")
    a(f"s_mul_i32 s{t0}, {sr(sG0)}, {64*N*4}")
    a(f"s_lshl_b32 s{t1}, {sr(sNT)}, 9")
    a(f"s_add_u32 s{t0}, s{t0}, s{t1}")
    a(f"s_mul_i32 s{t2}, {sr(sG0)}, {N*2}")
    a(f"s_lshl_b32 s{t1}, {sr(sNT)}, 8")
    a(f"s_add_u32 s{t2}, s{t2}, s{t1}")
    a(f"s_lshl_b32 s{t3}, {sr(sG0)}, 7")
    a(f"v_lshrrev_b32 v{x[0]}, 3, v{vL}")
    a(f"v_and_b32 v{x[1]}, 7, v{vL}")
    a(f"v_lshrrev_b32 v{x[2]}, 1, v{x[0]}")
    a(f"v_xor_b32 v{x[1]}, v{x[1]}, v{x[2]}")
    a(f"v_lshlrev_b32 v{x[1]}, 4, v{x[1]}")
    a(f"v_lshl_add_u32 v{x[1]}, v{x[0]}, 11, v{x[1]}")
    a(f"v_xor_b32 v{x[2]}, 64, v{x[1]}")
    a(f"v_lshlrev_b32 v{vFA}, 7, v{vL}")
    a(f"s_lshl_b32 s{sFO}, {sr(sNT)}, 10")
    a(f"s_add_u32 s{sFO}, s{sFO}, {FLAGB}")
    a("s_waitcnt lgkmcnt(0)")
    srd(S_W, KA+14, FLAGB + 224*128)
    a("s_mov_b64 exec, 0xff")
    a(f"buffer_load_dword v{vSNAP}, v{vFA}, {sr(S_W,4)}, s{sFO} offen sc1")
    a("s_mov_b64 exec, -1")
    srd(S_Q, KA+2, K*N*4)
    srd(S_D, KA+12, 256)
    def q_issue(Q, P):
        for i in range(8):
            a(f"buffer_load_dwordx4 {vr(Q+4*i,4)}, v{vq}, {sr(S_Q,4)}, s{t0} offen {o.qflags}")
            a(f"s_add_u32 s{t0}, s{t0}, {N*4}")
        a(f"buffer_load_dwordx2 {vr(P,2)}, v{vp}, {sr(S_S,4)}, s{t2} offen")
        a(f"buffer_load_dwordx2 {vr(P+2,2)}, v{vp}, {sr(S_Z,4)}, s{t2} offen")
        a(f"buffer_load_dwordx4 {vr(P+4,4)}, v{va}, {sr(S_A,4)}, s{t3} offen")
    srd(S_S, KA+4, 16*N*2); srd(S_Z, KA+6, 16*N*2); srd(S_A, KA+8, K*2)
    q_issue(QA, PA)
    srd(S_X, KA, M*K*2)
    for j in range(8):
        src = x[1] if j % 2 == 0 else x[2]
        a(f"v_add_u32 v{XV[j]}, {j*16384 - 1024*(j%4)}, v{src}")
    a(f"v_lshlrev_b32 v{vWL}, 4, v{vL}")
    a(f"s_lshl_b32 s{t1}, {sr(sMT)}, 8")
    a(f"s_lshl_b32 s{t4}, {sr(sP)}, 6")
    a(f"s_add_u32 s{t1}, s{t1}, s{t4}")
    a(f"s_lshl_b32 {sr(sXO)}, s{t1}, 11")
    a(f"s_lshl_b32 {sr(sXL)}, {sr(sP)}, 13")
    def x_dma():
        for j in range(8):
            if j % 4 == 0:
                a(f"s_add_u32 m0, s{sM0}, {(j//4)*4096}")
                a("s_nop 0")
            a(f"buffer_load_dwordx4 v{XV[j]}, {sr(S_X,4)}, s{sXS} offen offset:{(j%4)*1024} {o.xflags} lds")
    a(f"s_lshl_b32 s{sXS}, {sr(sG0)}, 7")
    a(f"s_add_u32 s{sXS}, s{sXS}, {sr(sXO)}")
    a(f"s_mov_b32 s{sM0}, {sr(sXL)}")
    x_dma()
    sQB, sPB_, sAB = 97, 98, 99
    a(f"s_add_u32 s{sQB}, s{t0}, {56*N*4}")
    a(f"s_add_u32 s{sPB_}, s{t2}, {N*2}")
    a(f"s_add_u32 s{sAB}, s{t3}, 128")
    if M32:
        a(f"v_lshrrev_b32 v{x[0]}, 3, v{vcq}"); a(f"v_lshlrev_b32 v{x[0]}, 5, v{x[0]}")
        a(f"v_bfe_u32 v{x[1]}, v{vcq}, 2, 1"); a(f"v_lshl_add_u32 v{x[0]}, v{x[1]}, 4, v{x[0]}")
        a(f"v_and_b32 v{x[1]}, 1, v{vcq}"); a(f"v_lshl_add_u32 v{x[0]}, v{x[1]}, 3, v{x[0]}")
        a(f"v_bfe_u32 v{x[1]}, v{vcq}, 1, 1"); a(f"v_lshl_add_u32 v{x[0]}, v{x[1]}, 2, v{x[0]}")
    else:
        a(f"v_lshrrev_b32 v{x[0]}, 3, v{vcq}"); a(f"v_lshlrev_b32 v{x[0]}, 5, v{x[0]}")
        a(f"v_and_b32 v{x[1]}, 1, v{vcq}"); a(f"v_lshl_add_u32 v{x[0]}, v{x[1]}, 4, v{x[0]}")
        a(f"v_bfe_u32 v{x[1]}, v{vcq}, 1, 2"); a(f"v_lshl_add_u32 v{x[0]}, v{x[1]}, 2, v{x[0]}")
    for i in range(4):
        a(f"v_add_u32 v{x[1]}, {i}, v{x[0]}")
        a(f"v_bfe_u32 v{x[2]}, v{x[1]}, 1, 3")
        a(f"v_bfe_u32 v{x[3]}, v{x[1]}, 4, 1")
        a(f"v_xor_b32 v{x[2]}, v{x[2]}, v{x[3]}")
        a(f"v_xor_b32 v{x[2]}, v{x[2]}, v{vo}")
        a(f"v_lshlrev_b32 v{x[2]}, 4, v{x[2]}")
        a(f"v_lshl_add_u32 v{vw[i]}, v{x[1]}, 7, v{x[2]}")
        a(f"v_add_u32 v{vw[i]}, {WOFF}, v{vw[i]}")
    a(f"s_mov_b32 {sr(sK24)}, 0x4b800000")
    a("v_mov_b32 v108, 0")
    a(f"s_mul_i32 {sr(sWO)}, {sr(sNT)}, {16*WSZ}")
    a(f"s_lshl_b32 s{t0}, {sr(sP)}, 12")
    a(f"s_add_u32 {sr(sWO)}, {sr(sWO)}, s{t0}")
    sWS_ = 47
    sM1 = t4
    sMASK = 101
    sLN2, sLV = 101, 42
    def dequant(Q, P, off, wr):
        RS, RZ, RA = P, P+2, P+4
        for c in range(4):
            if c & 1 == 0:
                a(f"v_lshlrev_b32 v{SP+c}, 16, v{RS+c//2}")
                a(f"v_lshlrev_b32 v{ZS+c}, 16, v{RZ+c//2}")
            else:
                a(f"v_and_b32 v{SP+c}, 0xffff0000, v{RS+c//2}")
                a(f"v_and_b32 v{ZS+c}, 0xffff0000, v{RZ+c//2}")
        for c in range(4): a(f"v_mul_f32 v{ZS+c}, -v{ZS+c}, v{SP+c}")
        for c in range(4): a(f"v_mul_f32 v{SP+c}, {sr(sK24)}, v{SP+c}")
        for i in range(8):
            if i & 1 == 0: a(f"v_lshlrev_b32 v{AF+i}, 16, v{RA+i//2}")
            else: a(f"v_and_b32 v{AF+i}, 0xffff0000, v{RA+i//2}")
        for c in range(4):
            for i in range(8):
                a(f"v_fma_mix_f32 v{T+i}, v{Q+4*i+c}, v{SP+c}, v{ZS+c} op_sel_hi:[1,0,0]")
            for i in range(8):
                a(f"v_mul_f32 v{T+i}, v{T+i}, v{AF+i}")
            for i in range(0, 8, 2):
                a(f"v_cvt_pk_bf16_f32 v{OUT+4*c+i//2}, v{T+i}, v{T+i+1}")
            a(f"ds_write_b128 v{wr[c]}, {vr(OUT+4*c,4)} offset:{off}")
    seq = ['SNAP'] + ['QA']*11 + ['X0']*8
    def vm(tag, txt):
        a(txt); seq.append(tag)
    def wait_vm(tag, extra=""):
        idx = max(i for i, t in enumerate(seq) if t == tag)
        n = len(seq) - 1 - idx
        a(f"s_waitcnt vmcnt({min(n,63)}) {extra}".rstrip())
    PB = 0
    vrbA, vrbB = 93, 94
    vwB = [109, 110, 111, 95]
    a(f"v_add_u32 v{vrbA}, s{t0}, v{vWL}")
    a(f"v_add_u32 v{vrbA}, {WOFF}, v{vrbA}")
    a(f"v_add_u32 v{vrbB}, {STG - WOFF}, v{vrbA}")
    for i in range(4): a(f"v_add_u32 v{vwB[i]}, {STG - WOFF}, v{vw[i]}")
    def publish(which):
        rb = vrbA if which == 'A' else vrbB
        for j in range(4):
            a(f"ds_read_b128 {vr(PB+j*4,4)}, v{rb} offset:{j*1024}")
        a(f"s_add_u32 s{t1}, {sr(sG0)}, {0 if which == 'A' else 1}")
        a(f"s_lshl_b32 s{t1}, s{t1}, 14")
        a(f"s_add_u32 s{t1}, s{t1}, {sr(sWO)}")
        for j in range(4):
            a(f"s_waitcnt lgkmcnt({3-j})")
            vm('ST'+which, f"buffer_store_dwordx4 {vr(PB+j*4,4)}, v{vWL}, {sr(S_W,4)}, s{t1} offen offset:{j*1024} {o.pubflags}")
    def gcalc(t, dst):
        if t < 2: a(f"s_add_u32 s{dst}, {sr(sG0)}, {t}")
        else:
            j = t - 1 if t <= 8 else t - 8
            a(f"s_add_u32 s{dst}, {sr(sMT)}, {j}")
            a(f"s_and_b32 s{dst}, s{dst}, 7")
            a(f"s_lshl_b32 s{dst}, s{dst}, 1")
            if t >= 9: a(f"s_add_u32 s{dst}, s{dst}, 1")
    def x_dma_t(t):
        gcalc(t, t1)
        a(f"s_lshl_b32 s{sXS}, s{t1}, 7")
        a(f"s_add_u32 s{sXS}, s{sXS}, {sr(sXO)}")
        for j in range(8):
            if j % 4 == 0:
                a(f"s_add_u32 m0, {sr(sXL)}, {(t%3)*SLOT + (j//4)*4096}")
                a("s_nop 0")
            vm(f'X{t}', f"buffer_load_dwordx4 v{XV[j]}, {sr(S_X,4)}, s{sXS} offen offset:{(j%4)*1024} {o.xflags} lds")
    vDEL = 108
    def refresh_issue():
        a("s_mov_b64 exec, 0xff")
        vm('RF', f"buffer_load_dword v{vCUR}, v{vFA}, {sr(S_W,4)}, s{sFO} offen sc1")
        a("s_mov_b64 exec, -1")
    def refresh_finish():
        a(f"v_sub_u32 v{vDEL}, v{vCUR}, v{vSNAP}")
        a("s_nop 1")
    def need(t):
        if t < 2: return
        level = 1 if t <= 8 else 2
        j = t - 1 if t <= 8 else t - 8
        a(f"s_add_u32 s{sLN2}, {sr(sMT)}, {j}"); a(f"s_and_b32 s{sLN2}, s{sLN2}, 7")
        a(f"s_mov_b32 s{t2}, 0")
        a.lab(f"L_need{t}")
        a(f"v_readlane_b32 s{t3}, v{vDEL}, s{sLN2}")
        a("s_nop 3")
        a(f"s_cmp_ge_u32 s{t3}, {level}")
        a(f"s_cbranch_scc1 L_nok{t}")
        a(f"s_add_u32 s{t2}, s{t2}, 1")
        a(f"s_cmp_lt_u32 s{t2}, {o.spin}")
        a(f"s_cbranch_scc0 L_nok{t}")
        a("s_mov_b64 exec, 0xff")
        a(f"buffer_load_dword v{vCUR}, v{vFA}, {sr(S_W,4)}, s{sFO} offen sc1")
        a("s_mov_b64 exec, -1")
        a("s_waitcnt vmcnt(0)")
        refresh_finish()
        a(f"s_cmp_lt_u32 s{t2}, 48")
        a(f"s_cbranch_scc1 L_need{t}")
        a(f"s_lshl_b32 s{t3}, {sr(sNT)}, 3")
        a(f"s_add_u32 s{t3}, s{t3}, s{sLN2}")
        a(f"v_mov_b32 v{x[3]}, 0")
        a("s_mov_b64 exec, 1")
        a(f"buffer_load_ubyte v{x[2]}, v{x[3]}, {sr(S_D,4)}, s{t3} offen sc1")
        a("s_waitcnt vmcnt(0)")
        a("s_mov_b64 exec, -1")
        a(f"v_readfirstlane_b32 s{t3}, v{x[2]}")
        a("s_nop 3")
        a(f"s_cmp_eq_u32 s{t3}, 0")
        a(f"s_cbranch_scc1 L_need{t}")
        a.lab(f"L_nok{t}")
    def w_dma_t(t):
        need(t)
        gcalc(t, t1)
        a(f"s_lshl_b32 s{sWS_}, s{t1}, 14")
        a(f"s_add_u32 s{sWS_}, s{sWS_}, {sr(sWO)}")
        a(f"s_lshl_b32 s{t0}, {sr(sP)}, 12")
        a(f"s_add_u32 m0, s{t0}, {(t%3)*SLOT + WOFF}")
        a("s_nop 0")
        for j in range(4):
            vm(f'W{t}', f"buffer_load_dwordx4 v{vWL}, {sr(S_W,4)}, s{sWS_} offen offset:{j*1024} {o.wflags} lds")
    def flag_store(inc, cond_sgpr_is_set):
        a(f"s_lshl_b32 s{t2}, {sr(sMT)}, 7")
        a(f"s_add_u32 s{t2}, s{t2}, s{sFO}")
        a(f"s_cmp_eq_u32 s{t3}, 1")
        a(f"s_cselect_b32 s{t2}, s{t2}, 0x7ff00000")
        a(f"v_readlane_b32 s{t1}, v{vSNAP}, {sr(sMT)}")
        a("s_nop 3")
        a(f"s_add_u32 s{t1}, s{t1}, {inc}")
        a(f"v_mov_b32 v{x[2]}, s{t1}")
        a(f"v_mov_b32 v{x[3]}, 0")
        a("s_mov_b64 exec, 1")
        vm('FL', f"buffer_store_dword v{x[2]}, v{x[3]}, {sr(S_W,4)}, s{t2} offen sc1")
        a("s_mov_b64 exec, -1")
    qb = []
    def qb_prepare():
        for i in range(8):
            qb.append(('q', i))
        qb.append(('s',)); qb.append(('z',)); qb.append(('a',))
    def qb_issue(n):
        for _ in range(n):
            if not qb: return
            k = qb.pop(0)
            if k[0] == 'q':
                a(f"s_add_u32 s{t1}, s{sQB}, {k[1]*N*4}")
                vm('QB', f"buffer_load_dwordx4 {vr(QB_+4*k[1],4)}, v{vq}, {sr(S_Q,4)}, s{t1} offen {o.qflags}")
            elif k[0] == 's': vm('QB', f"buffer_load_dwordx2 {vr(PB_,2)}, v{vp}, {sr(S_S,4)}, s{sPB_} offen")
            elif k[0] == 'z': vm('QB', f"buffer_load_dwordx2 {vr(PB_+2,2)}, v{vp}, {sr(S_Z,4)}, s{sPB_} offen")
            else: vm('QB', f"buffer_load_dwordx4 {vr(PB_+4,4)}, v{va}, {sr(S_A,4)}, s{sAB} offen")
    qb_prepare()
    def barrier(e):
        if o.estamp and e >= 1:
            a("s_waitcnt lgkmcnt(0)")
            a(f"v_writelane_b32 v255, s60, {e-1}")
            a(f"v_writelane_b32 v255, s62, {16+e-1}")
        a("s_barrier")
        if o.estamp:
            a("s_memrealtime s[60:61]")
            a("s_memtime s[62:63]")
    if o.qbearly: qb_issue(11)
    wait_vm('QA')
    stamp(1)
    dequant(QA, PA, 0, vw)
    wait_vm('X0', "lgkmcnt(0)")
    barrier(0)
    stamp(5)
    if not o.qbearly: qb_issue(11)
    publish('A')
    x_dma_t(1)
    wait_vm('STA')
    a(f"v_mov_b32 v{x[1]}, {CNT}")
    a(f"v_mov_b32 v{x[2]}, 1")
    a("s_mov_b64 exec, 1")
    a(f"ds_add_rtn_u32 v{x[3]}, v{x[1]}, v{x[2]}")
    a("s_waitcnt lgkmcnt(0)")
    a("s_mov_b64 exec, -1")
    a(f"v_readfirstlane_b32 s{t3}, v{x[3]}")
    a("s_nop 3")
    a(f"s_cmp_eq_u32 s{t3}, 3")
    a(f"s_cselect_b32 s{t3}, 1, 0")
    flag_store(1, None)
    stamp(3)
    wait_vm('QB')
    dequant(QB_, PB_, 0, vwB)
    x_dma_t(2)
    refresh_issue()
    wait_vm('RF', "lgkmcnt(0)")
    refresh_finish()
    barrier(1)
    w_dma_t(2)
    publish('B')
    x_dma_t(3)
    wait_vm('W2')
    barrier(2)
    for e in range(2, NSTEP - 1):
        if e == 2: w_dma_t(3)
        if e == o.fbe:
            a(f"s_cmp_eq_u32 {sr(sWV)}, 4")
            a(f"s_cselect_b32 s{t3}, 1, 0")
            flag_store(2, None)
        if e == o.rfe: refresh_issue()
        if e + 2 < NSTEP:
            w_dma_t(e + 2)
            x_dma_t(e + 2)
        wait_vm(f'X{e+1}' if e != 2 else 'W3')
        if e == o.rfe:
            wait_vm('RF')
            refresh_finish()
        barrier(e + 1)
    if o.stamp:
        a(f"s_cmp_eq_u32 {sr(sWV)}, 4")
        a("s_cbranch_scc0 L_end")
        if o.estamp:
            a("s_waitcnt lgkmcnt(0)")
            a("v_writelane_b32 v255, s60, 15")
            a("v_writelane_b32 v255, s62, 31")
            a(f"s_lshl_b32 s{t0}, s2, 8")
            a(f"s_add_u32 s{t0}, s{t0}, {129<<20}")
            a(f"s_add_u32 s96, s82, s{t0}")
            a(f"s_addc_u32 s97, s83, 0")
            a(f"v_lshlrev_b32 v254, 2, v{vL}")
            a("global_store_dword v254, v255, s[96:97]")
        dump_stamps((1, 3, 5))
    a.lab("L_end")
    a("s_endpgm")
    if o.helper:
        a.lab("L_helper")
        a(f"s_load_dwordx2 {sr(KA,2)}, s[0:1], 0")
        a("v_lshrrev_b32 v1, 6, v0")
        a("v_and_b32 v0, 63, v0")
        a(f"v_readfirstlane_b32 {sr(sWV)}, v1")
        a(f"s_sub_u32 s{t0}, s2, {NWG}")
        a(f"s_and_b32 {sr(sMT)}, s{t0}, 7")
        a(f"s_lshr_b32 s{t2}, s{t0}, 3")
        a(f"s_lshl_b32 s{t1}, {sr(sMT)}, 8")
        a(f"s_lshl_b32 s{t2}, s{t2}, 6")
        a(f"s_add_u32 s{t1}, s{t1}, s{t2}")
        a(f"s_lshl_b32 s{t3}, {sr(sWV)}, 3")
        a(f"s_add_u32 s{t1}, s{t1}, s{t3}")
        a(f"s_lshl_b32 s42, s{t1}, 11")
        a(f"s_lshl_b32 {sr(sG0)}, {sr(sMT)}, 1")
        a("v_lshrrev_b32 v3, 3, v0")
        a("v_and_b32 v4, 7, v0")
        a("v_lshlrev_b32 v4, 4, v4")
        a("v_lshl_add_u32 v3, v3, 11, v4")
        a("s_waitcnt lgkmcnt(0)")
        srd(S_X, KA, M*K*2)
        for t in range(o.hstart, NSTEP):
            if t < 2: a(f"s_add_u32 s{t0}, {sr(sG0)}, {t}")
            else:
                j = t - 1 if t <= 8 else t - 8
                a(f"s_add_u32 s{t0}, {sr(sMT)}, {j}"); a(f"s_and_b32 s{t0}, s{t0}, 7"); a(f"s_lshl_b32 s{t0}, s{t0}, 1")
                if t >= 9: a(f"s_add_u32 s{t0}, s{t0}, 1")
            a(f"s_lshl_b32 s{t0}, s{t0}, 7"); a(f"s_add_u32 s{t0}, s{t0}, s42")
            a(f"buffer_load_dwordx4 v[8:11], v3, {sr(S_X,4)}, s{t0} offen")
            if o.hdepth: a(f"s_waitcnt vmcnt({o.hdepth-1})")
        a("s_endpgm")
    a.raw('.section .rodata,"a"'); a.raw(".p2align 6"); a.raw(f".amdhsa_kernel {KNAME}")
    for d in ["next_free_vgpr 256", "next_free_sgpr 102", "accum_offset 256", "group_segment_fixed_size 0", "kernarg_size 64",
              "user_sgpr_count 2", "user_sgpr_kernarg_segment_ptr 1", "system_sgpr_workgroup_id_x 1"]:
        a.raw("  .amdhsa_" + d)
    a.raw(".end_amdhsa_kernel")
    return "\n".join(hdr) + "\n" + a.text()

if __name__ == "__main__":
    p = argparse.ArgumentParser()
    p.add_argument("-o", default="h.s")
    p.add_argument("--mfma", type=int, default=16)
    p.add_argument("--stamp", type=int, default=0)
    p.add_argument("--estamp", type=int, default=0)
    p.add_argument("--prio", type=int, default=0)
    p.add_argument("--rstride", type=int, default=2)
    p.add_argument("--stflags", default="nt")
    p.add_argument("--qflags", default="nt")
    p.add_argument("--xflags", default="")
    p.add_argument("--helper", type=int, default=1)
    p.add_argument("--hstart", type=int, default=0)
    p.add_argument("--spin", type=int, default=20000)
    p.add_argument("--nomfma", type=int, default=0)
    p.add_argument("--qbearly", type=int, default=1)
    p.add_argument("--fbe", type=int, default=3)
    p.add_argument("--rfe", type=int, default=6)
    p.add_argument("--border", type=int, default=1)
    p.add_argument("--nopub", type=int, default=0)
    p.add_argument("--pubflags", default="sc1")
    p.add_argument("--wflags", default="sc1")
    p.add_argument("--dbgout", type=int, default=0)
    p.add_argument("--s1", type=int, default=1)
    p.add_argument("--hdepth", type=int, default=2)
    p.add_argument("--dbgp", type=int, default=0)
    p.add_argument("--flag", type=int, default=1)
    p.add_argument("--cstride", type=int, default=2)
    p.add_argument("--sleep", type=int, default=4)
    o = p.parse_args()
    o.pubflags = o.pubflags.replace('+', ' '); o.wflags = o.wflags.replace('+', ' ')
    open(o.o, "w").write(gen(o))
```

```python
import sys, argparse

KNAME = "standalone__weight_only_int_omniquant__prompt_kernel"
M, K, N = 2048, 1024, 3584
TM, TN, KS = 256, 128, 64
NSTEP = K // KS
NWG = (M // TM) * (N // TN)

class A:
    def __init__(s): s.l = []
    def __call__(s, x): s.l.append("    " + x)
    def lab(s, x): s.l.append(x + ":")
    def raw(s, x): s.l.append(x)
    def text(s): return "\n".join(s.l) + "\n"

def vr(b, n=1): return f"v{b}" if n == 1 else f"v[{b}:{b+n-1}]"
def sr(b, n=1): return f"s{b}" if n == 1 else f"s[{b}:{b+n-1}]"

def gen(o):
    a = A()
    SLOT = 49152
    WOFF = 32768
    WSZ = 16384
    STG = SLOT + WOFF
    CNT = 3 * SLOT
    LDS = CNT + 64
    M32 = (o.mfma == 32)
    S_X, S_Q, S_S, S_Z, S_A, S_O, S_W, S_D = 4, 8, 12, 16, 20, 24, 92, 96
    S_W, S_D = 88, 92
    sMT, sNT, sWV, sG0 = 28, 29, 30, 31
    sT = 32
    sXO, sXL = 33, 34
    t0, t1, t2, t3, t4 = 35, 36, 37, 38, 39
    sK24 = 40
    sP, sU = 41, 42
    sWO = 43
    sC = 44
    sFO = 100
    sST = 48
    sWS = 64
    sDBG = 66
    KA = 68
    sCY = 84
    hdr = [f"; @launch grid=({256 if o.helper else NWG},1,1) block=(512,1,1) lds={LDS}"]
    a.raw('.amdgcn_target "amdgcn-amd-amdhsa--gfx950"')
    a.raw(".text"); a.raw(f".globl {KNAME}"); a.raw(".p2align 8"); a.raw(f".type {KNAME},@function")
    a.lab(KNAME)
    def stamp(i):
        if o.stamp: a(f"s_memrealtime {sr(sST + 2*i, 2)}")
    def dbg_out(pairs):
        a("s_waitcnt lgkmcnt(0)")
        srd(S_D, KA+12, 256)
        a("s_mov_b64 exec, 1")
        a("v_mov_b32 v1, 0")
        for (idx, sg, inv) in pairs:
            if inv: a(f"s_not_b32 s{t0}, s{sg}")
            else: a(f"s_mov_b32 s{t0}, s{sg}")
            a(f"v_mov_b32 v2, s{t0}")
            a(f"buffer_atomic_umax v2, v1, {sr(S_D,4)}, 0 offen offset:{idx*4}")
            a("s_nop 1")
    def dump_stamps(idxs, extra=None):
        if o.dbgout:
            prs = []
            for i in idxs:
                prs.append((i, sST+2*i, i == 0))
                prs.append((8+i, sST+2*i, True))
            dbg_out(prs)
            return
        a("s_waitcnt lgkmcnt(0)")
        a(f"s_lshl_b32 s{t0}, s2, 6")
        a(f"s_add_u32 s{t0}, s{t0}, {128<<20}")
        a(f"s_add_u32 {sr(sWS)}, s82, s{t0}")
        a(f"s_addc_u32 {sr(sWS+1)}, s83, 0")
        a("v_mov_b32 v1, 0")
        if extra: extra()
        for i in idxs:
            a(f"v_mov_b32 v2, {sr(sST+2*i)}")
            a(f"v_mov_b32 v3, {sr(sST+2*i+1)}")
            a(f"global_store_dwordx2 v1, v[2:3], {sr(sWS,2)} offset:{i*8}")
            a("s_nop 1")
    def srd(b, p, size):
        a(f"s_mov_b32 s{b}, s{p}")
        a(f"s_and_b32 s{b+1}, s{p+1}, 0xffff")
        a(f"s_mov_b32 s{b+2}, {size}")
        a(f"s_mov_b32 s{b+3}, 0x20000")
    if o.helper:
        a("s_cmp_ge_u32 s2, 256")
        a("s_cbranch_scc1 L_end")
        a(f"s_cmp_ge_u32 s2, {NWG}")
        a("s_cbranch_scc1 L_helper")
    else:
        a(f"s_cmp_ge_u32 s2, {NWG}")
        a("s_cbranch_scc1 L_end")
    stamp(0)
    a(f"s_load_dwordx4 {sr(KA,4)}, s[0:1], 0")
    a(f"s_load_dwordx4 {sr(KA+4,4)}, s[0:1], 16")
    a(f"s_load_dwordx4 {sr(KA+8,4)}, s[0:1], 32")
    a(f"s_load_dwordx4 {sr(KA+12,4)}, s[0:1], 48")
    a("v_lshrrev_b32 v1, 6, v0")
    a("v_and_b32 v0, 63, v0")
    a(f"v_readfirstlane_b32 {sr(sWV)}, v1")
    a(f"s_and_b32 s{t0}, s2, 7")
    a(f"s_lshr_b32 s{t1}, s2, 3")
    a(f"s_mul_i32 s{t0}, s{t0}, 28")
    a(f"s_add_u32 s{t0}, s{t0}, s{t1}")
    a(f"s_lshr_b32 {sr(sNT)}, s{t0}, 3")
    a(f"s_and_b32 {sr(sMT)}, s{t0}, 7")
    a(f"s_lshl_b32 {sr(sG0)}, {sr(sMT)}, 1")
    a(f"s_and_b32 {sr(sP)}, {sr(sWV)}, 3")
    a(f"s_lshr_b32 {sr(sU)}, {sr(sWV)}, 2")
    a(f"s_xor_b32 {sr(sU)}, {sr(sU)}, 1")
    vL = 254
    a(f"v_mov_b32 v{vL}, v0")
    a(f"s_cmp_ge_u32 {sr(sWV)}, 4")
    a("s_cbranch_scc1 L_loader")

    XF = [128, 144]; WF = [160, 192]
    B = 224
    vLANE = vL
    vXA = [B+1, B+2, B+3, B+4]; vWA = [B+5, B+6, B+7, B+8]
    vT = [B+9+i for i in range(12)]
    if o.prio: a(f"s_setprio {o.prio}")
    a(f"v_mov_b32 v{vT[0]}, {CNT}")
    a(f"v_mov_b32 v{vT[1]}, 0")
    a(f"ds_write_b32 v{vT[0]}, v{vT[1]}")
    lo = vT[5]; hi = vT[6]; f = vT[7]; tt = vT[8]
    if M32:
        a(f"v_and_b32 v{lo}, 31, v{vLANE}")
        a(f"v_lshrrev_b32 v{hi}, 5, v{vLANE}")
        a(f"v_bfe_u32 v{f}, v{vLANE}, 1, 3")
        a(f"v_xor_b32 v{tt}, v{hi}, v{f}")
        a(f"v_lshlrev_b32 v{tt}, 4, v{tt}")
        a(f"v_lshl_add_u32 v{vXA[0]}, v{lo}, 7, v{tt}")
        a(f"s_lshl_b32 s{t0}, {sr(sWV)}, 13")
        a(f"v_add_u32 v{vXA[0]}, s{t0}, v{vXA[0]}")
        a(f"v_xor_b32 v{vXA[1]}, 32, v{vXA[0]}")
        a(f"v_xor_b32 v{vXA[2]}, 64, v{vXA[0]}")
        a(f"v_xor_b32 v{vXA[3]}, 96, v{vXA[0]}")
        a(f"v_bfe_u32 v{tt}, v{vLANE}, 4, 1")
        a(f"v_xor_b32 v{f}, v{f}, v{tt}")
        a(f"v_xor_b32 v{tt}, v{hi}, v{f}")
        a(f"v_lshlrev_b32 v{tt}, 4, v{tt}")
        a(f"v_lshl_add_u32 v{vWA[0]}, v{lo}, 7, v{tt}")
        a(f"v_add_u32 v{vWA[0]}, {WOFF}, v{vWA[0]}")
        a(f"v_xor_b32 v{vWA[1]}, 32, v{vWA[0]}")
        a(f"v_xor_b32 v{vWA[2]}, 64, v{vWA[0]}")
        a(f"v_xor_b32 v{vWA[3]}, 96, v{vWA[0]}")
    else:
        a(f"v_and_b32 v{lo}, 15, v{vLANE}")
        a(f"v_lshrrev_b32 v{hi}, 4, v{vLANE}")
        a(f"v_bfe_u32 v{f}, v{vLANE}, 1, 3")
        a(f"v_xor_b32 v{tt}, v{hi}, v{f}")
        a(f"v_lshlrev_b32 v{tt}, 4, v{tt}")
        a(f"v_lshl_add_u32 v{vWA[0]}, v{lo}, 7, v{tt}")
        a(f"s_lshl_b32 s{t0}, {sr(sWV)}, 13")
        a(f"v_add_u32 v{vXA[0]}, s{t0}, v{vWA[0]}")
        a(f"v_xor_b32 v{vXA[1]}, 64, v{vXA[0]}")
        a(f"v_add_u32 v{vWA[0]}, {WOFF}, v{vWA[0]}")
        a(f"v_xor_b32 v{vWA[1]}, 16, v{vWA[0]}")
        a(f"v_xor_b32 v{vWA[2]}, 64, v{vWA[0]}")
        a(f"v_xor_b32 v{vWA[3]}, 0x50, v{vWA[0]}")
    a("s_waitcnt lgkmcnt(0)")
    sOO = 42
    E = vT
    srd(S_O, KA+10, M*N*2)
    a(f"s_lshl_b32 s{t0}, {sr(sWV)}, 14")
    a(f"s_add_u32 s{t0}, s{t0}, {SLOT}")
    if M32:
        a(f"v_and_b32 v{E[0]}, 31, v{vLANE}")
        a(f"v_lshrrev_b32 v{E[1]}, 5, v{vLANE}")
    else:
        a(f"v_and_b32 v{E[0]}, 15, v{vLANE}")
        a(f"v_lshrrev_b32 v{E[1]}, 4, v{vLANE}")
    a(f"v_and_b32 v{E[2]}, 7, v{vLANE}")
    a(f"v_xor_b32 v{E[2]}, v{E[2]}, v{E[1]}")
    a(f"v_lshlrev_b32 v{E[2]}, 4, v{E[2]}")
    a(f"v_lshl_add_u32 v{E[3]}, v{E[0]}, 8, v{E[2]}")
    a(f"v_add_u32 v{E[3]}, s{t0}, v{E[3]}")
    a(f"v_xor_b32 v{E[4]}, 64, v{E[3]}")
    if M32:
        a(f"v_xor_b32 v{E[5]}, 32, v{E[3]}")
        a(f"v_xor_b32 v{E[6]}, 96, v{E[3]}")
    a(f"v_lshrrev_b32 v{E[7]}, 4, v{vLANE}")
    a(f"v_and_b32 v{E[8]}, 15, v{vLANE}")
    a(f"v_xor_b32 v{E[9]}, v{E[8]}, v{E[7]}")
    a(f"v_lshlrev_b32 v{E[9]}, 4, v{E[9]}")
    a(f"v_lshl_add_u32 v{E[9]}, v{E[7]}, 8, v{E[9]}")
    a(f"v_add_u32 v{E[9]}, s{t0}, v{E[9]}")
    a(f"v_xor_b32 v{E[10]}, 64, v{E[9]}")
    a(f"s_mov_b32 s{t1}, {N*2}")
    a(f"v_mul_lo_u32 v{E[11]}, s{t1}, v{E[7]}")
    a(f"v_lshl_add_u32 v{E[11]}, v{E[8]}, 4, v{E[11]}")
    a(f"s_lshl_b32 s{t0}, {sr(sMT)}, 8")
    a(f"s_lshl_b32 s{t1}, {sr(sWV)}, 6")
    a(f"s_add_u32 s{t0}, s{t0}, s{t1}")
    a(f"s_mul_i32 s{t0}, s{t0}, {N*2}")
    a(f"s_lshl_b32 s{t1}, {sr(sNT)}, 8")
    a(f"s_add_u32 s{sOO}, s{t0}, s{t1}")
    for i in range(128): a(f"v_mov_b32 v{i}, 0")
    for i in range(XF[1], XF[1]+16): a(f"v_mov_b32 v{i}, 0")
    for i in range(WF[1], WF[1]+32): a(f"v_mov_b32 v{i}, 0")
    a(f"s_mov_b32 {sr(sT)}, 0")
    a(f"s_mov_b32 s{sC}, {SLOT}"); a(f"s_mov_b32 s{sC+1}, {-2*SLOT & 0xffffffff}")
    a(f"s_mov_b32 s{sC+2}, 0")
    if o.stamp:
        a(f"s_memtime {sr(sCY,2)}")
    def phase(h, sread, smma, do_read=True, do_mma=True):
        reads = []
        if do_read:
            if M32:
                for ks in range(2):
                    for nb in range(4):
                        reads.append(f"ds_read_b128 {vr(WF[sread]+(ks*4+nb)*4,4)}, v{vWA[h*2+ks]} offset:{nb*4096}")
                        if nb < 2:
                            reads.append(f"ds_read_b128 {vr(XF[sread]+(ks*2+nb)*4,4)}, v{vXA[h*2+ks]} offset:{nb*4096}")
            else:
                for nb in range(8):
                    reads.append(f"ds_read_b128 {vr(WF[sread]+nb*4,4)}, v{vWA[h*2+(nb&1)]} offset:{nb*2048}")
                    if nb < 4:
                        reads.append(f"ds_read_b128 {vr(XF[sread]+nb*4,4)}, v{vXA[h]} offset:{nb*2048}")
        mm = []
        if do_mma:
            if M32:
                for ks in range(2):
                    for nb in range(4):
                        for mb in range(2):
                            c = (mb*4+nb)*16
                            mm.append(f"v_mfma_f32_32x32x16_bf16 {vr(c,16)}, {vr(WF[smma]+(ks*4+nb)*4,4)}, {vr(XF[smma]+(ks*2+mb)*4,4)}, {vr(c,16)}")
            else:
                for nb in range(8):
                    for mb in range(4):
                        c = (mb*8+nb)*4
                        mm.append(f"v_mfma_f32_16x16x32_bf16 {vr(c,4)}, {vr(WF[smma]+nb*4,4)}, {vr(XF[smma]+mb*4,4)}, {vr(c,4)}")
        ri = 0
        rstride = o.rstride if not M32 else 1
        for i, m in enumerate(mm):
            if not o.nomfma: a(m)
            if ri < len(reads) and (i % rstride == 0):
                a(reads[ri]); ri += 1
        while ri < len(reads):
            a(reads[ri]); ri += 1
    nxa = 4 if M32 else 2
    a.lab("L_cloop")
    a("s_barrier")
    phase(0, 0, 1)
    a("s_waitcnt lgkmcnt(0)")
    phase(1, 1, 0)
    a(f"s_add_u32 {sr(sT)}, {sr(sT)}, 1")
    a(f"s_add_u32 s{sC+2}, s{sC+2}, 1")
    a(f"s_cmp_eq_u32 s{sC+2}, 3")
    a(f"s_cselect_b32 s{t1}, s{sC+1}, s{sC}")
    a(f"s_cselect_b32 s{sC+2}, 0, s{sC+2}")
    a("s_waitcnt lgkmcnt(0)")
    for i in range(nxa): a(f"v_add_u32 v{vXA[i]}, s{t1}, v{vXA[i]}")
    for i in range(4): a(f"v_add_u32 v{vWA[i]}, s{t1}, v{vWA[i]}")
    a(f"s_cmp_lt_u32 {sr(sT)}, {NSTEP}")
    a("s_cbranch_scc1 L_cloop")
    assert not M32
    TPL = [128+4*i for i in range(4)] + [160+4*i for i in range(8)]
    tp = 0
    def nexttmp():
        nonlocal tp
        r = TPL[tp % len(TPL)]
        tp += 1
        return r
    ldsq = []
    def Ml(mb):
        return [f"v_mfma_f32_16x16x32_bf16 {vr((mb*8+nb)*4,4)}, {vr(WF[1]+nb*4,4)}, {vr(XF[1]+mb*4,4)}, {vr((mb*8+nb)*4,4)}" for nb in range(8)]
    def Wl(mb):
        out = []
        for P in range(4):
            r = nexttmp()
            for b in range(2):
                c = (mb*8+2*P+b)*4
                out.append((None, f"v_cvt_pk_bf16_f32 v{r+2*b}, v{c}, v{c+1}"))
                out.append((None, f"v_cvt_pk_bf16_f32 v{r+2*b+1}, v{c+2}, v{c+3}"))
            var = E[3] if (P & 1) == 0 else E[4]
            out.append((('W', mb, P), f"ds_write_b128 v{var}, {vr(r,4)} offset:{(P>>1)*128 + mb*4096}"))
        return out
    def Rl(mb):
        out = []
        for t in range(4):
            tg = mb*4 + t
            var = E[9] if (tg & 1) == 0 else E[10]
            out.append((('R', mb, t), f"ds_read_b128 {vr(mb*32+t*4,4)}, v{var} offset:{tg*1024}"))
        return out
    def emit(lst):
        for tag, txt in lst:
            a(txt)
            if tag: ldsq.append(tag)
    def mix(mm, lst):
        lst = list(lst); n = len(mm)
        per = (len(lst) + n - 1) // n
        for m in mm:
            if not o.nomfma: a(m)
            emit(lst[:per]); lst = lst[per:]
        emit(lst)
    def Sb(mb):
        for t in range(4):
            n = len(ldsq) - 1 - ldsq.index(('R', mb, t))
            a(f"s_waitcnt lgkmcnt({min(n,15)})")
            a(f"buffer_store_dwordx4 {vr(mb*32+t*4,4)}, v{E[11]}, {sr(S_O,4)}, s{sOO} offen {o.stflags}")
            a(f"s_add_u32 s{sOO}, s{sOO}, {4*N*2}")
    for m in Ml(0) + Ml(1):
        if not o.nomfma: a(m)
    mix(Ml(2), Wl(0))
    mix(Ml(3), Wl(1) + Rl(0))
    stamp(2)
    if o.stamp: a(f"s_memtime {sr(sCY+2,2)}")
    emit(Wl(2)); emit(Rl(1)); Sb(0)
    emit(Wl(3)); emit(Rl(2)); Sb(1)
    emit(Rl(3)); Sb(2); Sb(3)
    if o.stamp:
        a("s_waitcnt vmcnt(0)")
        stamp(4)
        a(f"s_cmp_eq_u32 {sr(sWV)}, 0")
        a("s_cbranch_scc0 L_end")
        def extra():
            a(f"s_sub_u32 s{sCY+2}, s{sCY+2}, s{sCY}")
            a(f"s_subb_u32 s{sCY+3}, s{sCY+3}, s{sCY+1}")
            a(f"v_mov_b32 v2, s{sCY+2}"); a(f"v_mov_b32 v3, s{sCY+3}")
            a(f"global_store_dwordx2 v1, v[2:3], {sr(sWS,2)} offset:56"); a("s_nop 1")
        dump_stamps((0, 2, 4), extra)
    a("s_endpgm")

    a.lab("L_loader")
    QA, QB_ = 0, 112
    PA, PB_ = 32, 144
    SP = 40; ZS = 44; AF = 48; T = 56; OUT = 64
    vq, vp, va, vo, vcq = 80, 81, 82, 83, 84
    vw = [85, 86, 87, 88]
    x = [89, 90, 91, 92]
    XV = [96+j for j in range(8)]
    vWL = 104
    vFA, vSNAP, vCUR = 105, 106, 107
    FLAGB = 8 << 20
    sXS, sM0 = 45, 46
    a(f"v_lshrrev_b32 v{x[0]}, 5, v{vL}")
    a(f"v_and_b32 v{vcq}, 31, v{vL}")
    a(f"s_lshl_b32 s{t0}, {sr(sP)}, 1")
    a(f"v_add_u32 v{vo}, s{t0}, v{x[0]}")
    a(f"s_mov_b32 s{t0}, {8*N*4}")
    a(f"v_mul_lo_u32 v{vq}, s{t0}, v{vo}")
    a(f"v_lshl_add_u32 v{vq}, v{vcq}, 4, v{vq}")
    a(f"v_lshlrev_b32 v{vp}, 3, v{vcq}")
    a(f"v_lshlrev_b32 v{va}, 4, v{vo}")
    a(f"s_mul_i32 s{t0}, {sr(sG0)}, {64*N*4}")
    a(f"s_lshl_b32 s{t1}, {sr(sNT)}, 9")
    a(f"s_add_u32 s{t0}, s{t0}, s{t1}")
    a(f"s_mul_i32 s{t2}, {sr(sG0)}, {N*2}")
    a(f"s_lshl_b32 s{t1}, {sr(sNT)}, 8")
    a(f"s_add_u32 s{t2}, s{t2}, s{t1}")
    a(f"s_lshl_b32 s{t3}, {sr(sG0)}, 7")
    a(f"v_lshrrev_b32 v{x[0]}, 3, v{vL}")
    a(f"v_and_b32 v{x[1]}, 7, v{vL}")
    a(f"v_lshrrev_b32 v{x[2]}, 1, v{x[0]}")
    a(f"v_xor_b32 v{x[1]}, v{x[1]}, v{x[2]}")
    a(f"v_lshlrev_b32 v{x[1]}, 4, v{x[1]}")
    a(f"v_lshl_add_u32 v{x[1]}, v{x[0]}, 11, v{x[1]}")
    a(f"v_xor_b32 v{x[2]}, 64, v{x[1]}")
    a(f"v_lshlrev_b32 v{vFA}, 7, v{vL}")
    a(f"s_lshl_b32 s{sFO}, {sr(sNT)}, 10")
    a(f"s_add_u32 s{sFO}, s{sFO}, {FLAGB}")
    a("s_waitcnt lgkmcnt(0)")
    srd(S_W, KA+14, FLAGB + 224*128)
    a("s_mov_b64 exec, 0xff")
    a(f"buffer_load_dword v{vSNAP}, v{vFA}, {sr(S_W,4)}, s{sFO} offen sc1")
    a("s_mov_b64 exec, -1")
    srd(S_Q, KA+2, K*N*4)
    srd(S_D, KA+12, 256)
    def q_issue(Q, P):
        for i in range(8):
            a(f"buffer_load_dwordx4 {vr(Q+4*i,4)}, v{vq}, {sr(S_Q,4)}, s{t0} offen {o.qflags}")
            a(f"s_add_u32 s{t0}, s{t0}, {N*4}")
        a(f"buffer_load_dwordx2 {vr(P,2)}, v{vp}, {sr(S_S,4)}, s{t2} offen")
        a(f"buffer_load_dwordx2 {vr(P+2,2)}, v{vp}, {sr(S_Z,4)}, s{t2} offen")
        a(f"buffer_load_dwordx4 {vr(P+4,4)}, v{va}, {sr(S_A,4)}, s{t3} offen")
    srd(S_S, KA+4, 16*N*2); srd(S_Z, KA+6, 16*N*2); srd(S_A, KA+8, K*2)
    q_issue(QA, PA)
    srd(S_X, KA, M*K*2)
    for j in range(8):
        src = x[1] if j % 2 == 0 else x[2]
        a(f"v_add_u32 v{XV[j]}, {j*16384 - 1024*(j%4)}, v{src}")
    a(f"v_lshlrev_b32 v{vWL}, 4, v{vL}")
    a(f"s_lshl_b32 s{t1}, {sr(sMT)}, 8")
    a(f"s_lshl_b32 s{t4}, {sr(sP)}, 6")
    a(f"s_add_u32 s{t1}, s{t1}, s{t4}")
    a(f"s_lshl_b32 {sr(sXO)}, s{t1}, 11")
    a(f"s_lshl_b32 {sr(sXL)}, {sr(sP)}, 13")
    def x_dma():
        for j in range(8):
            if j % 4 == 0:
                a(f"s_add_u32 m0, s{sM0}, {(j//4)*4096}")
                a("s_nop 0")
            a(f"buffer_load_dwordx4 v{XV[j]}, {sr(S_X,4)}, s{sXS} offen offset:{(j%4)*1024} {o.xflags} lds")
    a(f"s_lshl_b32 s{sXS}, {sr(sG0)}, 7")
    a(f"s_add_u32 s{sXS}, s{sXS}, {sr(sXO)}")
    a(f"s_mov_b32 s{sM0}, {sr(sXL)}")
    x_dma()
    sQB, sPB_, sAB = 97, 98, 99
    a(f"s_add_u32 s{sQB}, s{t0}, {56*N*4}")
    a(f"s_add_u32 s{sPB_}, s{t2}, {N*2}")
    a(f"s_add_u32 s{sAB}, s{t3}, 128")
    if M32:
        a(f"v_lshrrev_b32 v{x[0]}, 3, v{vcq}"); a(f"v_lshlrev_b32 v{x[0]}, 5, v{x[0]}")
        a(f"v_bfe_u32 v{x[1]}, v{vcq}, 2, 1"); a(f"v_lshl_add_u32 v{x[0]}, v{x[1]}, 4, v{x[0]}")
        a(f"v_and_b32 v{x[1]}, 1, v{vcq}"); a(f"v_lshl_add_u32 v{x[0]}, v{x[1]}, 3, v{x[0]}")
        a(f"v_bfe_u32 v{x[1]}, v{vcq}, 1, 1"); a(f"v_lshl_add_u32 v{x[0]}, v{x[1]}, 2, v{x[0]}")
    else:
        a(f"v_lshrrev_b32 v{x[0]}, 3, v{vcq}"); a(f"v_lshlrev_b32 v{x[0]}, 5, v{x[0]}")
        a(f"v_and_b32 v{x[1]}, 1, v{vcq}"); a(f"v_lshl_add_u32 v{x[0]}, v{x[1]}, 4, v{x[0]}")
        a(f"v_bfe_u32 v{x[1]}, v{vcq}, 1, 2"); a(f"v_lshl_add_u32 v{x[0]}, v{x[1]}, 2, v{x[0]}")
    for i in range(4):
        a(f"v_add_u32 v{x[1]}, {i}, v{x[0]}")
        a(f"v_bfe_u32 v{x[2]}, v{x[1]}, 1, 3")
        a(f"v_bfe_u32 v{x[3]}, v{x[1]}, 4, 1")
        a(f"v_xor_b32 v{x[2]}, v{x[2]}, v{x[3]}")
        a(f"v_xor_b32 v{x[2]}, v{x[2]}, v{vo}")
        a(f"v_lshlrev_b32 v{x[2]}, 4, v{x[2]}")
        a(f"v_lshl_add_u32 v{vw[i]}, v{x[1]}, 7, v{x[2]}")
        a(f"v_add_u32 v{vw[i]}, {WOFF}, v{vw[i]}")
    a(f"s_mov_b32 {sr(sK24)}, 0x4b800000")
    a("v_mov_b32 v108, 0")
    a(f"s_mul_i32 {sr(sWO)}, {sr(sNT)}, {16*WSZ}")
    a(f"s_lshl_b32 s{t0}, {sr(sP)}, 12")
    a(f"s_add_u32 {sr(sWO)}, {sr(sWO)}, s{t0}")
    sWS_ = 47
    sM1 = t4
    sMASK = 101
    sLN2, sLV = 101, 42
    def dequant(Q, P, off, wr):
        RS, RZ, RA = P, P+2, P+4
        for c in range(4):
            if c & 1 == 0:
                a(f"v_lshlrev_b32 v{SP+c}, 16, v{RS+c//2}")
                a(f"v_lshlrev_b32 v{ZS+c}, 16, v{RZ+c//2}")
            else:
                a(f"v_and_b32 v{SP+c}, 0xffff0000, v{RS+c//2}")
                a(f"v_and_b32 v{ZS+c}, 0xffff0000, v{RZ+c//2}")
        for c in range(4): a(f"v_mul_f32 v{ZS+c}, -v{ZS+c}, v{SP+c}")
        for c in range(4): a(f"v_mul_f32 v{SP+c}, {sr(sK24)}, v{SP+c}")
        for i in range(8):
            if i & 1 == 0: a(f"v_lshlrev_b32 v{AF+i}, 16, v{RA+i//2}")
            else: a(f"v_and_b32 v{AF+i}, 0xffff0000, v{RA+i//2}")
        for c in range(4):
            for i in range(8):
                a(f"v_fma_mix_f32 v{T+i}, v{Q+4*i+c}, v{SP+c}, v{ZS+c} op_sel_hi:[1,0,0]")
            for i in range(8):
                a(f"v_mul_f32 v{T+i}, v{T+i}, v{AF+i}")
            for i in range(0, 8, 2):
                a(f"v_cvt_pk_bf16_f32 v{OUT+4*c+i//2}, v{T+i}, v{T+i+1}")
            a(f"ds_write_b128 v{wr[c]}, {vr(OUT+4*c,4)} offset:{off}")
    seq = ['SNAP'] + ['QA']*11 + ['X0']*8
    def vm(tag, txt):
        a(txt); seq.append(tag)
    def wait_vm(tag, extra=""):
        idx = max(i for i, t in enumerate(seq) if t == tag)
        n = len(seq) - 1 - idx
        a(f"s_waitcnt vmcnt({min(n,63)}) {extra}".rstrip())
    PB = 0
    vrbA, vrbB = 93, 94
    vwB = [109, 110, 111, 95]
    a(f"v_add_u32 v{vrbA}, s{t0}, v{vWL}")
    a(f"v_add_u32 v{vrbA}, {WOFF}, v{vrbA}")
    a(f"v_add_u32 v{vrbB}, {STG - WOFF}, v{vrbA}")
    for i in range(4): a(f"v_add_u32 v{vwB[i]}, {STG - WOFF}, v{vw[i]}")
    def publish(which):
        rb = vrbA if which == 'A' else vrbB
        for j in range(4):
            a(f"ds_read_b128 {vr(PB+j*4,4)}, v{rb} offset:{j*1024}")
        a(f"s_add_u32 s{t1}, {sr(sG0)}, {0 if which == 'A' else 1}")
        a(f"s_lshl_b32 s{t1}, s{t1}, 14")
        a(f"s_add_u32 s{t1}, s{t1}, {sr(sWO)}")
        for j in range(4):
            a(f"s_waitcnt lgkmcnt({3-j})")
            vm('ST'+which, f"buffer_store_dwordx4 {vr(PB+j*4,4)}, v{vWL}, {sr(S_W,4)}, s{t1} offen offset:{j*1024} {o.pubflags}")
    def gcalc(t, dst):
        if t < 2: a(f"s_add_u32 s{dst}, {sr(sG0)}, {t}")
        else:
            j = t - 1 if t <= 8 else t - 8
            a(f"s_add_u32 s{dst}, {sr(sMT)}, {j}")
            a(f"s_and_b32 s{dst}, s{dst}, 7")
            a(f"s_lshl_b32 s{dst}, s{dst}, 1")
            if t >= 9: a(f"s_add_u32 s{dst}, s{dst}, 1")
    def x_dma_t(t):
        gcalc(t, t1)
        a(f"s_lshl_b32 s{sXS}, s{t1}, 7")
        a(f"s_add_u32 s{sXS}, s{sXS}, {sr(sXO)}")
        for j in range(8):
            if j % 4 == 0:
                a(f"s_add_u32 m0, {sr(sXL)}, {(t%3)*SLOT + (j//4)*4096}")
                a("s_nop 0")
            vm(f'X{t}', f"buffer_load_dwordx4 v{XV[j]}, {sr(S_X,4)}, s{sXS} offen offset:{(j%4)*1024} {o.xflags} lds")
    vDEL = 108
    def refresh_issue():
        a("s_mov_b64 exec, 0xff")
        vm('RF', f"buffer_load_dword v{vCUR}, v{vFA}, {sr(S_W,4)}, s{sFO} offen sc1")
        a("s_mov_b64 exec, -1")
    def refresh_finish():
        a(f"v_sub_u32 v{vDEL}, v{vCUR}, v{vSNAP}")
        a("s_nop 1")
    def need(t):
        if t < 2: return
        level = 1 if t <= 8 else 2
        j = t - 1 if t <= 8 else t - 8
        a(f"s_add_u32 s{sLN2}, {sr(sMT)}, {j}"); a(f"s_and_b32 s{sLN2}, s{sLN2}, 7")
        a(f"s_mov_b32 s{t2}, 0")
        a.lab(f"L_need{t}")
        a(f"v_readlane_b32 s{t3}, v{vDEL}, s{sLN2}")
        a("s_nop 3")
        a(f"s_cmp_ge_u32 s{t3}, {level}")
        a(f"s_cbranch_scc1 L_nok{t}")
        a(f"s_add_u32 s{t2}, s{t2}, 1")
        a(f"s_cmp_lt_u32 s{t2}, {o.spin}")
        a(f"s_cbranch_scc0 L_nok{t}")
        a("s_mov_b64 exec, 0xff")
        a(f"buffer_load_dword v{vCUR}, v{vFA}, {sr(S_W,4)}, s{sFO} offen sc1")
        a("s_mov_b64 exec, -1")
        a("s_waitcnt vmcnt(0)")
        refresh_finish()
        a(f"s_branch L_need{t}")
        a.lab(f"L_nok{t}")
    def w_dma_t(t):
        need(t)
        gcalc(t, t1)
        a(f"s_lshl_b32 s{sWS_}, s{t1}, 14")
        a(f"s_add_u32 s{sWS_}, s{sWS_}, {sr(sWO)}")
        a(f"s_lshl_b32 s{t0}, {sr(sP)}, 12")
        a(f"s_add_u32 m0, s{t0}, {(t%3)*SLOT + WOFF}")
        a("s_nop 0")
        for j in range(4):
            vm(f'W{t}', f"buffer_load_dwordx4 v{vWL}, {sr(S_W,4)}, s{sWS_} offen offset:{j*1024} {o.wflags} lds")
    def flag_store(inc, cond_sgpr_is_set):
        a(f"s_lshl_b32 s{t2}, {sr(sMT)}, 7")
        a(f"s_add_u32 s{t2}, s{t2}, s{sFO}")
        a(f"s_cmp_eq_u32 s{t3}, 1")
        a(f"s_cselect_b32 s{t2}, s{t2}, 0x7ff00000")
        a(f"v_readlane_b32 s{t1}, v{vSNAP}, {sr(sMT)}")
        a("s_nop 3")
        a(f"s_add_u32 s{t1}, s{t1}, {inc}")
        a(f"v_mov_b32 v{x[2]}, s{t1}")
        a(f"v_mov_b32 v{x[3]}, 0")
        a("s_mov_b64 exec, 1")
        vm('FL', f"buffer_store_dword v{x[2]}, v{x[3]}, {sr(S_W,4)}, s{t2} offen sc1")
        a("s_mov_b64 exec, -1")
    qb = []
    def qb_prepare():
        for i in range(8):
            qb.append(('q', i))
        qb.append(('s',)); qb.append(('z',)); qb.append(('a',))
    def qb_issue(n):
        for _ in range(n):
            if not qb: return
            k = qb.pop(0)
            if k[0] == 'q':
                a(f"s_add_u32 s{t1}, s{sQB}, {k[1]*N*4}")
                vm('QB', f"buffer_load_dwordx4 {vr(QB_+4*k[1],4)}, v{vq}, {sr(S_Q,4)}, s{t1} offen {o.qflags}")
            elif k[0] == 's': vm('QB', f"buffer_load_dwordx2 {vr(PB_,2)}, v{vp}, {sr(S_S,4)}, s{sPB_} offen")
            elif k[0] == 'z': vm('QB', f"buffer_load_dwordx2 {vr(PB_+2,2)}, v{vp}, {sr(S_Z,4)}, s{sPB_} offen")
            else: vm('QB', f"buffer_load_dwordx4 {vr(PB_+4,4)}, v{va}, {sr(S_A,4)}, s{sAB} offen")
    qb_prepare()
    def barrier(e):
        if o.estamp and e >= 1:
            a("s_waitcnt lgkmcnt(0)")
            a(f"v_writelane_b32 v255, s60, {e-1}")
            a(f"v_writelane_b32 v255, s62, {16+e-1}")
        a("s_barrier")
        if o.estamp:
            a("s_memrealtime s[60:61]")
            a("s_memtime s[62:63]")
    if o.qbearly: qb_issue(11)
    wait_vm('QA')
    stamp(1)
    dequant(QA, PA, 0, vw)
    wait_vm('X0', "lgkmcnt(0)")
    barrier(0)
    stamp(5)
    if not o.qbearly: qb_issue(11)
    publish('A')
    x_dma_t(1)
    wait_vm('STA')
    a(f"v_mov_b32 v{x[1]}, {CNT}")
    a(f"v_mov_b32 v{x[2]}, 1")
    a("s_mov_b64 exec, 1")
    a(f"ds_add_rtn_u32 v{x[3]}, v{x[1]}, v{x[2]}")
    a("s_waitcnt lgkmcnt(0)")
    a("s_mov_b64 exec, -1")
    a(f"v_readfirstlane_b32 s{t3}, v{x[3]}")
    a("s_nop 3")
    a(f"s_cmp_eq_u32 s{t3}, 3")
    a(f"s_cselect_b32 s{t3}, 1, 0")
    flag_store(1, None)
    stamp(3)
    wait_vm('QB')
    dequant(QB_, PB_, 0, vwB)
    x_dma_t(2)
    refresh_issue()
    wait_vm('RF', "lgkmcnt(0)")
    refresh_finish()
    barrier(1)
    w_dma_t(2)
    publish('B')
    x_dma_t(3)
    wait_vm('W2')
    barrier(2)
    for e in range(2, NSTEP - 1):
        if e == 2: w_dma_t(3)
        if e == o.fbe:
            a(f"s_cmp_eq_u32 {sr(sWV)}, 4")
            a(f"s_cselect_b32 s{t3}, 1, 0")
            flag_store(2, None)
        if e == o.rfe: refresh_issue()
        if e + 2 < NSTEP:
            w_dma_t(e + 2)
            x_dma_t(e + 2)
        wait_vm(f'X{e+1}' if e != 2 else 'W3')
        if e == o.rfe:
            wait_vm('RF')
            refresh_finish()
        barrier(e + 1)
    if o.stamp:
        a(f"s_cmp_eq_u32 {sr(sWV)}, 4")
        a("s_cbranch_scc0 L_end")
        if o.estamp:
            a("s_waitcnt lgkmcnt(0)")
            a("v_writelane_b32 v255, s60, 15")
            a("v_writelane_b32 v255, s62, 31")
            a(f"s_lshl_b32 s{t0}, s2, 8")
            a(f"s_add_u32 s{t0}, s{t0}, {129<<20}")
            a(f"s_add_u32 s96, s82, s{t0}")
            a(f"s_addc_u32 s97, s83, 0")
            a(f"v_lshlrev_b32 v254, 2, v{vL}")
            a("global_store_dword v254, v255, s[96:97]")
        dump_stamps((1, 3, 5))
    a.lab("L_end")
    a("s_endpgm")
    if o.helper:
        a.lab("L_helper")
        a(f"s_load_dwordx2 {sr(KA,2)}, s[0:1], 0")
        a("v_lshrrev_b32 v1, 6, v0")
        a("v_and_b32 v0, 63, v0")
        a(f"v_readfirstlane_b32 {sr(sWV)}, v1")
        a(f"s_sub_u32 s{t0}, s2, {NWG}")
        a(f"s_and_b32 {sr(sMT)}, s{t0}, 7")
        a(f"s_lshr_b32 s{t2}, s{t0}, 3")
        a(f"s_lshl_b32 s{t1}, {sr(sMT)}, 8")
        a(f"s_lshl_b32 s{t2}, s{t2}, 6")
        a(f"s_add_u32 s{t1}, s{t1}, s{t2}")
        a(f"s_lshl_b32 s{t3}, {sr(sWV)}, 3")
        a(f"s_add_u32 s{t1}, s{t1}, s{t3}")
        a(f"s_lshl_b32 s42, s{t1}, 11")
        a(f"s_lshl_b32 {sr(sG0)}, {sr(sMT)}, 1")
        a("v_lshrrev_b32 v3, 3, v0")
        a("v_and_b32 v4, 7, v0")
        a("v_lshlrev_b32 v4, 4, v4")
        a("v_lshl_add_u32 v3, v3, 11, v4")
        a("s_waitcnt lgkmcnt(0)")
        srd(S_X, KA, M*K*2)
        for t in range(o.hstart, NSTEP):
            if t < 2: a(f"s_add_u32 s{t0}, {sr(sG0)}, {t}")
            else:
                j = t - 1 if t <= 8 else t - 8
                a(f"s_add_u32 s{t0}, {sr(sMT)}, {j}"); a(f"s_and_b32 s{t0}, s{t0}, 7"); a(f"s_lshl_b32 s{t0}, s{t0}, 1")
                if t >= 9: a(f"s_add_u32 s{t0}, s{t0}, 1")
            a(f"s_lshl_b32 s{t0}, s{t0}, 7"); a(f"s_add_u32 s{t0}, s{t0}, s42")
            a(f"buffer_load_dwordx4 v[8:11], v3, {sr(S_X,4)}, s{t0} offen")
            if o.hdepth: a(f"s_waitcnt vmcnt({o.hdepth-1})")
        a("s_endpgm")
    a.raw('.section .rodata,"a"'); a.raw(".p2align 6"); a.raw(f".amdhsa_kernel {KNAME}")
    for d in ["next_free_vgpr 256", "next_free_sgpr 102", "accum_offset 256", "group_segment_fixed_size 0", "kernarg_size 64",
              "user_sgpr_count 2", "user_sgpr_kernarg_segment_ptr 1", "system_sgpr_workgroup_id_x 1"]:
        a.raw("  .amdhsa_" + d)
    a.raw(".end_amdhsa_kernel")
    return "\n".join(hdr) + "\n" + a.text()

if __name__ == "__main__":
    p = argparse.ArgumentParser()
    p.add_argument("-o", default="h.s")
    p.add_argument("--mfma", type=int, default=16)
    p.add_argument("--stamp", type=int, default=0)
    p.add_argument("--estamp", type=int, default=0)
    p.add_argument("--prio", type=int, default=0)
    p.add_argument("--rstride", type=int, default=2)
    p.add_argument("--stflags", default="nt")
    p.add_argument("--qflags", default="nt")
    p.add_argument("--xflags", default="")
    p.add_argument("--helper", type=int, default=1)
    p.add_argument("--hstart", type=int, default=0)
    p.add_argument("--spin", type=int, default=4000)
    p.add_argument("--nomfma", type=int, default=0)
    p.add_argument("--qbearly", type=int, default=1)
    p.add_argument("--fbe", type=int, default=3)
    p.add_argument("--rfe", type=int, default=6)
    p.add_argument("--border", type=int, default=1)
    p.add_argument("--nopub", type=int, default=0)
    p.add_argument("--pubflags", default="sc1")
    p.add_argument("--wflags", default="sc1")
    p.add_argument("--dbgout", type=int, default=0)
    p.add_argument("--s1", type=int, default=1)
    p.add_argument("--hdepth", type=int, default=2)
    p.add_argument("--dbgp", type=int, default=0)
    p.add_argument("--flag", type=int, default=1)
    p.add_argument("--cstride", type=int, default=2)
    p.add_argument("--sleep", type=int, default=4)
    o = p.parse_args()
    o.pubflags = o.pubflags.replace('+', ' '); o.wflags = o.wflags.replace('+', ' ')
    open(o.o, "w").write(gen(o))
```

```python
import sys, argparse

KNAME = "standalone__weight_only_int_omniquant__prompt_kernel"
M, K, N = 2048, 1024, 3584
TM, TN, KS = 256, 128, 64
NSTEP = K // KS
NWG = (M // TM) * (N // TN)

class A:
    def __init__(s): s.l = []
    def __call__(s, x): s.l.append("    " + x)
    def lab(s, x): s.l.append(x + ":")
    def raw(s, x): s.l.append(x)
    def text(s): return "\n".join(s.l) + "\n"

def vr(b, n=1): return f"v{b}" if n == 1 else f"v[{b}:{b+n-1}]"
def sr(b, n=1): return f"s{b}" if n == 1 else f"s[{b}:{b+n-1}]"

def gen(o):
    a = A()
    SLOT = 49152
    WOFF = 32768
    WSZ = 16384
    STG = SLOT + WOFF
    CNT = 3 * SLOT
    LDS = CNT + 64
    M32 = (o.mfma == 32)
    S_X, S_Q, S_S, S_Z, S_A, S_O, S_W, S_D = 4, 8, 12, 16, 20, 24, 92, 96
    S_W, S_D = 88, 92
    sMT, sNT, sWV, sG0 = 28, 29, 30, 31
    sT = 32
    sXO, sXL = 33, 34
    t0, t1, t2, t3, t4 = 35, 36, 37, 38, 39
    sK24 = 40
    sP, sU = 41, 42
    sWO = 43
    sC = 44
    sFO = 100
    sST = 48
    sWS = 64
    sDBG = 66
    KA = 68
    sCY = 84
    hdr = [f"; @launch grid=({256 if o.helper else NWG},1,1) block=(512,1,1) lds={LDS}"]
    a.raw('.amdgcn_target "amdgcn-amd-amdhsa--gfx950"')
    a.raw(".text"); a.raw(f".globl {KNAME}"); a.raw(".p2align 8"); a.raw(f".type {KNAME},@function")
    a.lab(KNAME)
    def stamp(i):
        if o.stamp: a(f"s_memrealtime {sr(sST + 2*i, 2)}")
    def dbg_out(pairs):
        a("s_waitcnt lgkmcnt(0)")
        srd(S_D, KA+12, 256)
        a("s_mov_b64 exec, 1")
        a("v_mov_b32 v1, 0")
        for (idx, sg, inv) in pairs:
            if inv: a(f"s_not_b32 s{t0}, s{sg}")
            else: a(f"s_mov_b32 s{t0}, s{sg}")
            a(f"v_mov_b32 v2, s{t0}")
            a(f"buffer_atomic_umax v2, v1, {sr(S_D,4)}, 0 offen offset:{idx*4}")
            a("s_nop 1")
    def dump_stamps(idxs, extra=None):
        if o.dbgout:
            prs = []
            for i in idxs:
                prs.append((i, sST+2*i, i == 0))
                prs.append((8+i, sST+2*i, True))
            dbg_out(prs)
            return
        a("s_waitcnt lgkmcnt(0)")
        a(f"s_lshl_b32 s{t0}, s2, 6")
        a(f"s_add_u32 s{t0}, s{t0}, {128<<20}")
        a(f"s_add_u32 {sr(sWS)}, s82, s{t0}")
        a(f"s_addc_u32 {sr(sWS+1)}, s83, 0")
        a("v_mov_b32 v1, 0")
        if extra: extra()
        for i in idxs:
            a(f"v_mov_b32 v2, {sr(sST+2*i)}")
            a(f"v_mov_b32 v3, {sr(sST+2*i+1)}")
            a(f"global_store_dwordx2 v1, v[2:3], {sr(sWS,2)} offset:{i*8}")
            a("s_nop 1")
    def srd(b, p, size):
        a(f"s_mov_b32 s{b}, s{p}")
        a(f"s_and_b32 s{b+1}, s{p+1}, 0xffff")
        a(f"s_mov_b32 s{b+2}, {size}")
        a(f"s_mov_b32 s{b+3}, 0x20000")
    if o.helper:
        a("s_cmp_ge_u32 s2, 256")
        a("s_cbranch_scc1 L_end")
        a(f"s_cmp_ge_u32 s2, {NWG}")
        a("s_cbranch_scc1 L_helper")
    else:
        a(f"s_cmp_ge_u32 s2, {NWG}")
        a("s_cbranch_scc1 L_end")
    stamp(0)
    a(f"s_load_dwordx4 {sr(KA,4)}, s[0:1], 0")
    a(f"s_load_dwordx4 {sr(KA+4,4)}, s[0:1], 16")
    a(f"s_load_dwordx4 {sr(KA+8,4)}, s[0:1], 32")
    a(f"s_load_dwordx4 {sr(KA+12,4)}, s[0:1], 48")
    a("v_lshrrev_b32 v1, 6, v0")
    a("v_and_b32 v0, 63, v0")
    a(f"v_readfirstlane_b32 {sr(sWV)}, v1")
    a(f"s_and_b32 s{t0}, s2, 7")
    a(f"s_lshr_b32 s{t1}, s2, 3")
    a(f"s_mul_i32 s{t0}, s{t0}, 28")
    a(f"s_add_u32 s{t0}, s{t0}, s{t1}")
    a(f"s_lshr_b32 {sr(sNT)}, s{t0}, 3")
    a(f"s_and_b32 {sr(sMT)}, s{t0}, 7")
    a(f"s_lshl_b32 {sr(sG0)}, {sr(sMT)}, 1")
    a(f"s_and_b32 {sr(sP)}, {sr(sWV)}, 3")
    a(f"s_lshr_b32 {sr(sU)}, {sr(sWV)}, 2")
    a(f"s_xor_b32 {sr(sU)}, {sr(sU)}, 1")
    vL = 254
    a(f"v_mov_b32 v{vL}, v0")
    a(f"s_cmp_ge_u32 {sr(sWV)}, 4")
    a("s_cbranch_scc1 L_loader")

    XF = [128, 144]; WF = [160, 192]
    B = 224
    vLANE = vL
    vXA = [B+1, B+2, B+3, B+4]; vWA = [B+5, B+6, B+7, B+8]
    vT = [B+9+i for i in range(12)]
    if o.prio: a(f"s_setprio {o.prio}")
    a(f"v_mov_b32 v{vT[0]}, {CNT}")
    a(f"v_mov_b32 v{vT[1]}, 0")
    a(f"ds_write_b32 v{vT[0]}, v{vT[1]}")
    lo = vT[5]; hi = vT[6]; f = vT[7]; tt = vT[8]
    if M32:
        a(f"v_and_b32 v{lo}, 31, v{vLANE}")
        a(f"v_lshrrev_b32 v{hi}, 5, v{vLANE}")
        a(f"v_bfe_u32 v{f}, v{vLANE}, 1, 3")
        a(f"v_xor_b32 v{tt}, v{hi}, v{f}")
        a(f"v_lshlrev_b32 v{tt}, 4, v{tt}")
        a(f"v_lshl_add_u32 v{vXA[0]}, v{lo}, 7, v{tt}")
        a(f"s_lshl_b32 s{t0}, {sr(sWV)}, 13")
        a(f"v_add_u32 v{vXA[0]}, s{t0}, v{vXA[0]}")
        a(f"v_xor_b32 v{vXA[1]}, 32, v{vXA[0]}")
        a(f"v_xor_b32 v{vXA[2]}, 64, v{vXA[0]}")
        a(f"v_xor_b32 v{vXA[3]}, 96, v{vXA[0]}")
        a(f"v_bfe_u32 v{tt}, v{vLANE}, 4, 1")
        a(f"v_xor_b32 v{f}, v{f}, v{tt}")
        a(f"v_xor_b32 v{tt}, v{hi}, v{f}")
        a(f"v_lshlrev_b32 v{tt}, 4, v{tt}")
        a(f"v_lshl_add_u32 v{vWA[0]}, v{lo}, 7, v{tt}")
        a(f"v_add_u32 v{vWA[0]}, {WOFF}, v{vWA[0]}")
        a(f"v_xor_b32 v{vWA[1]}, 32, v{vWA[0]}")
        a(f"v_xor_b32 v{vWA[2]}, 64, v{vWA[0]}")
        a(f"v_xor_b32 v{vWA[3]}, 96, v{vWA[0]}")
    else:
        a(f"v_and_b32 v{lo}, 15, v{vLANE}")
        a(f"v_lshrrev_b32 v{hi}, 4, v{vLANE}")
        a(f"v_bfe_u32 v{f}, v{vLANE}, 1, 3")
        a(f"v_xor_b32 v{tt}, v{hi}, v{f}")
        a(f"v_lshlrev_b32 v{tt}, 4, v{tt}")
        a(f"v_lshl_add_u32 v{vWA[0]}, v{lo}, 7, v{tt}")
        a(f"s_lshl_b32 s{t0}, {sr(sWV)}, 13")
        a(f"v_add_u32 v{vXA[0]}, s{t0}, v{vWA[0]}")
        a(f"v_xor_b32 v{vXA[1]}, 64, v{vXA[0]}")
        a(f"v_add_u32 v{vWA[0]}, {WOFF}, v{vWA[0]}")
        a(f"v_xor_b32 v{vWA[1]}, 16, v{vWA[0]}")
        a(f"v_xor_b32 v{vWA[2]}, 64, v{vWA[0]}")
        a(f"v_xor_b32 v{vWA[3]}, 0x50, v{vWA[0]}")
    a("s_waitcnt lgkmcnt(0)")
    sOO = 42
    E = vT
    srd(S_O, KA+10, M*N*2)
    a(f"s_lshl_b32 s{t0}, {sr(sWV)}, 14")
    a(f"s_add_u32 s{t0}, s{t0}, {SLOT}")
    if M32:
        a(f"v_and_b32 v{E[0]}, 31, v{vLANE}")
        a(f"v_lshrrev_b32 v{E[1]}, 5, v{vLANE}")
    else:
        a(f"v_and_b32 v{E[0]}, 15, v{vLANE}")
        a(f"v_lshrrev_b32 v{E[1]}, 4, v{vLANE}")
    a(f"v_and_b32 v{E[2]}, 7, v{vLANE}")
    a(f"v_xor_b32 v{E[2]}, v{E[2]}, v{E[1]}")
    a(f"v_lshlrev_b32 v{E[2]}, 4, v{E[2]}")
    a(f"v_lshl_add_u32 v{E[3]}, v{E[0]}, 8, v{E[2]}")
    a(f"v_add_u32 v{E[3]}, s{t0}, v{E[3]}")
    a(f"v_xor_b32 v{E[4]}, 64, v{E[3]}")
    if M32:
        a(f"v_xor_b32 v{E[5]}, 32, v{E[3]}")
        a(f"v_xor_b32 v{E[6]}, 96, v{E[3]}")
    a(f"v_lshrrev_b32 v{E[7]}, 4, v{vLANE}")
    a(f"v_and_b32 v{E[8]}, 15, v{vLANE}")
    a(f"v_xor_b32 v{E[9]}, v{E[8]}, v{E[7]}")
    a(f"v_lshlrev_b32 v{E[9]}, 4, v{E[9]}")
    a(f"v_lshl_add_u32 v{E[9]}, v{E[7]}, 8, v{E[9]}")
    a(f"v_add_u32 v{E[9]}, s{t0}, v{E[9]}")
    a(f"v_xor_b32 v{E[10]}, 64, v{E[9]}")
    a(f"s_mov_b32 s{t1}, {N*2}")
    a(f"v_mul_lo_u32 v{E[11]}, s{t1}, v{E[7]}")
    a(f"v_lshl_add_u32 v{E[11]}, v{E[8]}, 4, v{E[11]}")
    a(f"s_lshl_b32 s{t0}, {sr(sMT)}, 8")
    a(f"s_lshl_b32 s{t1}, {sr(sWV)}, 6")
    a(f"s_add_u32 s{t0}, s{t0}, s{t1}")
    a(f"s_mul_i32 s{t0}, s{t0}, {N*2}")
    a(f"s_lshl_b32 s{t1}, {sr(sNT)}, 8")
    a(f"s_add_u32 s{sOO}, s{t0}, s{t1}")
    for i in range(128): a(f"v_mov_b32 v{i}, 0")
    for i in range(XF[1], XF[1]+16): a(f"v_mov_b32 v{i}, 0")
    for i in range(WF[1], WF[1]+32): a(f"v_mov_b32 v{i}, 0")
    a(f"s_mov_b32 {sr(sT)}, 0")
    a(f"s_mov_b32 s{sC}, {SLOT}"); a(f"s_mov_b32 s{sC+1}, {-2*SLOT & 0xffffffff}")
    a(f"s_mov_b32 s{sC+2}, 0")
    if o.stamp:
        a(f"s_memtime {sr(sCY,2)}")
    def phase(h, sread, smma, do_read=True, do_mma=True, late=()):
        reads = []
        if do_read:
            if M32:
                for ks in range(2):
                    for nb in range(4):
                        reads.append(f"ds_read_b128 {vr(WF[sread]+(ks*4+nb)*4,4)}, v{vWA[h*2+ks]} offset:{nb*4096}")
                        if nb < 2:
                            reads.append(f"ds_read_b128 {vr(XF[sread]+(ks*2+nb)*4,4)}, v{vXA[h*2+ks]} offset:{nb*4096}")
            else:
                for nb in range(8):
                    reads.append(f"ds_read_b128 {vr(WF[sread]+nb*4,4)}, v{vWA[h*2+(nb&1)]} offset:{nb*2048}")
                    if nb < 4:
                        reads.append(f"ds_read_b128 {vr(XF[sread]+nb*4,4)}, v{vXA[h]} offset:{nb*2048}")
        mm = []
        if do_mma:
            if M32:
                for ks in range(2):
                    for nb in range(4):
                        for mb in range(2):
                            c = (mb*4+nb)*16
                            mm.append(f"v_mfma_f32_32x32x16_bf16 {vr(c,16)}, {vr(WF[smma]+(ks*4+nb)*4,4)}, {vr(XF[smma]+(ks*2+mb)*4,4)}, {vr(c,16)}")
            else:
                for nb in range(8):
                    for mb in range(4):
                        c = (mb*8+nb)*4
                        mm.append(f"v_mfma_f32_16x16x32_bf16 {vr(c,4)}, {vr(WF[smma]+nb*4,4)}, {vr(XF[smma]+mb*4,4)}, {vr(c,4)}")
        ri = 0
        rstride = o.rstride if not M32 else 1
        late = list(late)
        for i, m in enumerate(mm):
            if not o.nomfma: a(m)
            if ri < len(reads) and (i % rstride == 0):
                a(reads[ri]); ri += 1
            elif ri >= len(reads) and late:
                a(late.pop(0))
        while ri < len(reads):
            a(reads[ri]); ri += 1
        for x_ in late: a(x_)
    nxa = 4 if M32 else 2
    a.lab("L_cloop")
    a("s_barrier")
    if o.tight:
        sc = [f"s_add_u32 {sr(sT)}, {sr(sT)}, 1", f"s_add_u32 s{sC+2}, s{sC+2}, 1", f"s_cmp_eq_u32 s{sC+2}, 3",
              f"s_cselect_b32 s{t1}, s{sC+1}, s{sC}", f"s_cselect_b32 s{sC+2}, 0, s{sC+2}"]
        phase(0, 0, 1, late=sc)
        a("s_waitcnt lgkmcnt(0)")
        va = [f"v_add_u32 v{vXA[i]}, s{t1}, v{vXA[i]}" for i in range(nxa)] + [f"v_add_u32 v{vWA[i]}, s{t1}, v{vWA[i]}" for i in range(4)]
        phase(1, 1, 0, late=va + [f"s_cmp_lt_u32 {sr(sT)}, {NSTEP}", "s_waitcnt lgkmcnt(0)"])
        a("s_cbranch_scc1 L_cloop")
    else:
        phase(0, 0, 1)
        a("s_waitcnt lgkmcnt(0)")
        phase(1, 1, 0)
        a(f"s_add_u32 {sr(sT)}, {sr(sT)}, 1")
        a(f"s_add_u32 s{sC+2}, s{sC+2}, 1")
        a(f"s_cmp_eq_u32 s{sC+2}, 3")
        a(f"s_cselect_b32 s{t1}, s{sC+1}, s{sC}")
        a(f"s_cselect_b32 s{sC+2}, 0, s{sC+2}")
        a("s_waitcnt lgkmcnt(0)")
        for i in range(nxa): a(f"v_add_u32 v{vXA[i]}, s{t1}, v{vXA[i]}")
        for i in range(4): a(f"v_add_u32 v{vWA[i]}, s{t1}, v{vWA[i]}")
        a(f"s_cmp_lt_u32 {sr(sT)}, {NSTEP}")
        a("s_cbranch_scc1 L_cloop")
    assert not M32
    TPL = [128+4*i for i in range(4)] + [160+4*i for i in range(8)]
    tp = 0
    def nexttmp():
        nonlocal tp
        r = TPL[tp % len(TPL)]
        tp += 1
        return r
    ldsq = []
    def Ml(mb):
        return [f"v_mfma_f32_16x16x32_bf16 {vr((mb*8+nb)*4,4)}, {vr(WF[1]+nb*4,4)}, {vr(XF[1]+mb*4,4)}, {vr((mb*8+nb)*4,4)}" for nb in range(8)]
    def Wl(mb):
        out = []
        for P in range(4):
            r = nexttmp()
            for b in range(2):
                c = (mb*8+2*P+b)*4
                out.append((None, f"v_cvt_pk_bf16_f32 v{r+2*b}, v{c}, v{c+1}"))
                out.append((None, f"v_cvt_pk_bf16_f32 v{r+2*b+1}, v{c+2}, v{c+3}"))
            var = E[3] if (P & 1) == 0 else E[4]
            out.append((('W', mb, P), f"ds_write_b128 v{var}, {vr(r,4)} offset:{(P>>1)*128 + mb*4096}"))
        return out
    def Rl(mb):
        out = []
        for t in range(4):
            tg = mb*4 + t
            var = E[9] if (tg & 1) == 0 else E[10]
            out.append((('R', mb, t), f"ds_read_b128 {vr(mb*32+t*4,4)}, v{var} offset:{tg*1024}"))
        return out
    def emit(lst):
        for tag, txt in lst:
            a(txt)
            if tag: ldsq.append(tag)
    def mix(mm, lst):
        lst = list(lst); n = len(mm)
        per = (len(lst) + n - 1) // n
        for m in mm:
            if not o.nomfma: a(m)
            emit(lst[:per]); lst = lst[per:]
        emit(lst)
    def Sb(mb):
        for t in range(4):
            n = len(ldsq) - 1 - ldsq.index(('R', mb, t))
            a(f"s_waitcnt lgkmcnt({min(n,15)})")
            a(f"buffer_store_dwordx4 {vr(mb*32+t*4,4)}, v{E[11]}, {sr(S_O,4)}, s{sOO} offen {o.stflags}")
            a(f"s_add_u32 s{sOO}, s{sOO}, {4*N*2}")
    for m in Ml(0) + Ml(1):
        if not o.nomfma: a(m)
    mix(Ml(2), Wl(0))
    mix(Ml(3), Wl(1) + Rl(0))
    stamp(2)
    if o.stamp: a(f"s_memtime {sr(sCY+2,2)}")
    emit(Wl(2)); emit(Rl(1)); Sb(0)
    emit(Wl(3)); emit(Rl(2)); Sb(1)
    emit(Rl(3)); Sb(2); Sb(3)
    if o.stamp:
        a("s_waitcnt vmcnt(0)")
        stamp(4)
        a(f"s_cmp_eq_u32 {sr(sWV)}, 0")
        a("s_cbranch_scc0 L_end")
        def extra():
            a(f"s_sub_u32 s{sCY+2}, s{sCY+2}, s{sCY}")
            a(f"s_subb_u32 s{sCY+3}, s{sCY+3}, s{sCY+1}")
            a(f"v_mov_b32 v2, s{sCY+2}"); a(f"v_mov_b32 v3, s{sCY+3}")
            a(f"global_store_dwordx2 v1, v[2:3], {sr(sWS,2)} offset:56"); a("s_nop 1")
        dump_stamps((0, 2, 4), extra)
    a("s_endpgm")

    a.lab("L_loader")
    QA, QB_ = 0, 112
    PA, PB_ = 32, 144
    SP = 40; ZS = 44; AF = 48; T = 56; OUT = 64
    vq, vp, va, vo, vcq = 80, 81, 82, 83, 84
    vw = [85, 86, 87, 88]
    x = [89, 90, 91, 92]
    XV = [96+j for j in range(8)]
    vWL = 104
    vFA, vSNAP, vCUR = 105, 106, 107
    FLAGB = 8 << 20
    sXS, sM0 = 45, 46
    a(f"v_lshrrev_b32 v{x[0]}, 5, v{vL}")
    a(f"v_and_b32 v{vcq}, 31, v{vL}")
    a(f"s_lshl_b32 s{t0}, {sr(sP)}, 1")
    a(f"v_add_u32 v{vo}, s{t0}, v{x[0]}")
    a(f"s_mov_b32 s{t0}, {8*N*4}")
    a(f"v_mul_lo_u32 v{vq}, s{t0}, v{vo}")
    a(f"v_lshl_add_u32 v{vq}, v{vcq}, 4, v{vq}")
    a(f"v_lshlrev_b32 v{vp}, 3, v{vcq}")
    a(f"v_lshlrev_b32 v{va}, 4, v{vo}")
    a(f"s_mul_i32 s{t0}, {sr(sG0)}, {64*N*4}")
    a(f"s_lshl_b32 s{t1}, {sr(sNT)}, 9")
    a(f"s_add_u32 s{t0}, s{t0}, s{t1}")
    a(f"s_mul_i32 s{t2}, {sr(sG0)}, {N*2}")
    a(f"s_lshl_b32 s{t1}, {sr(sNT)}, 8")
    a(f"s_add_u32 s{t2}, s{t2}, s{t1}")
    a(f"s_lshl_b32 s{t3}, {sr(sG0)}, 7")
    a(f"v_lshrrev_b32 v{x[0]}, 3, v{vL}")
    a(f"v_and_b32 v{x[1]}, 7, v{vL}")
    a(f"v_lshrrev_b32 v{x[2]}, 1, v{x[0]}")
    a(f"v_xor_b32 v{x[1]}, v{x[1]}, v{x[2]}")
    a(f"v_lshlrev_b32 v{x[1]}, 4, v{x[1]}")
    a(f"v_lshl_add_u32 v{x[1]}, v{x[0]}, 11, v{x[1]}")
    a(f"v_xor_b32 v{x[2]}, 64, v{x[1]}")
    a(f"v_lshlrev_b32 v{vFA}, 7, v{vL}")
    a(f"s_lshl_b32 s{sFO}, {sr(sNT)}, 10")
    a(f"s_add_u32 s{sFO}, s{sFO}, {FLAGB}")
    a("s_waitcnt lgkmcnt(0)")
    srd(S_W, KA+14, FLAGB + 224*128)
    a("s_mov_b64 exec, 0xff")
    a(f"buffer_load_dword v{vSNAP}, v{vFA}, {sr(S_W,4)}, s{sFO} offen sc1")
    a("s_mov_b64 exec, -1")
    srd(S_Q, KA+2, K*N*4)
    srd(S_D, KA+12, 256)
    def q_issue(Q, P):
        for i in range(8):
            a(f"buffer_load_dwordx4 {vr(Q+4*i,4)}, v{vq}, {sr(S_Q,4)}, s{t0} offen {o.qflags}")
            a(f"s_add_u32 s{t0}, s{t0}, {N*4}")
        a(f"buffer_load_dwordx2 {vr(P,2)}, v{vp}, {sr(S_S,4)}, s{t2} offen")
        a(f"buffer_load_dwordx2 {vr(P+2,2)}, v{vp}, {sr(S_Z,4)}, s{t2} offen")
        a(f"buffer_load_dwordx4 {vr(P+4,4)}, v{va}, {sr(S_A,4)}, s{t3} offen")
    srd(S_S, KA+4, 16*N*2); srd(S_Z, KA+6, 16*N*2); srd(S_A, KA+8, K*2)
    q_issue(QA, PA)
    srd(S_X, KA, M*K*2)
    for j in range(8):
        src = x[1] if j % 2 == 0 else x[2]
        a(f"v_add_u32 v{XV[j]}, {j*16384 - 1024*(j%4)}, v{src}")
    a(f"v_lshlrev_b32 v{vWL}, 4, v{vL}")
    a(f"s_lshl_b32 s{t1}, {sr(sMT)}, 8")
    a(f"s_lshl_b32 s{t4}, {sr(sP)}, 6")
    a(f"s_add_u32 s{t1}, s{t1}, s{t4}")
    a(f"s_lshl_b32 {sr(sXO)}, s{t1}, 11")
    a(f"s_lshl_b32 {sr(sXL)}, {sr(sP)}, 13")
    def x_dma():
        for j in range(8):
            if j % 4 == 0:
                a(f"s_add_u32 m0, s{sM0}, {(j//4)*4096}")
                a("s_nop 0")
            a(f"buffer_load_dwordx4 v{XV[j]}, {sr(S_X,4)}, s{sXS} offen offset:{(j%4)*1024} {o.xflags} lds")
    a(f"s_lshl_b32 s{sXS}, {sr(sG0)}, 7")
    a(f"s_add_u32 s{sXS}, s{sXS}, {sr(sXO)}")
    a(f"s_mov_b32 s{sM0}, {sr(sXL)}")
    x_dma()
    sQB, sPB_, sAB = 97, 98, 99
    a(f"s_add_u32 s{sQB}, s{t0}, {56*N*4}")
    a(f"s_add_u32 s{sPB_}, s{t2}, {N*2}")
    a(f"s_add_u32 s{sAB}, s{t3}, 128")
    if M32:
        a(f"v_lshrrev_b32 v{x[0]}, 3, v{vcq}"); a(f"v_lshlrev_b32 v{x[0]}, 5, v{x[0]}")
        a(f"v_bfe_u32 v{x[1]}, v{vcq}, 2, 1"); a(f"v_lshl_add_u32 v{x[0]}, v{x[1]}, 4, v{x[0]}")
        a(f"v_and_b32 v{x[1]}, 1, v{vcq}"); a(f"v_lshl_add_u32 v{x[0]}, v{x[1]}, 3, v{x[0]}")
        a(f"v_bfe_u32 v{x[1]}, v{vcq}, 1, 1"); a(f"v_lshl_add_u32 v{x[0]}, v{x[1]}, 2, v{x[0]}")
    else:
        a(f"v_lshrrev_b32 v{x[0]}, 3, v{vcq}"); a(f"v_lshlrev_b32 v{x[0]}, 5, v{x[0]}")
        a(f"v_and_b32 v{x[1]}, 1, v{vcq}"); a(f"v_lshl_add_u32 v{x[0]}, v{x[1]}, 4, v{x[0]}")
        a(f"v_bfe_u32 v{x[1]}, v{vcq}, 1, 2"); a(f"v_lshl_add_u32 v{x[0]}, v{x[1]}, 2, v{x[0]}")
    for i in range(4):
        a(f"v_add_u32 v{x[1]}, {i}, v{x[0]}")
        a(f"v_bfe_u32 v{x[2]}, v{x[1]}, 1, 3")
        a(f"v_bfe_u32 v{x[3]}, v{x[1]}, 4, 1")
        a(f"v_xor_b32 v{x[2]}, v{x[2]}, v{x[3]}")
        a(f"v_xor_b32 v{x[2]}, v{x[2]}, v{vo}")
        a(f"v_lshlrev_b32 v{x[2]}, 4, v{x[2]}")
        a(f"v_lshl_add_u32 v{vw[i]}, v{x[1]}, 7, v{x[2]}")
        a(f"v_add_u32 v{vw[i]}, {WOFF}, v{vw[i]}")
    a(f"s_mov_b32 {sr(sK24)}, 0x4b800000")
    a("v_mov_b32 v108, 0")
    a(f"s_mul_i32 {sr(sWO)}, {sr(sNT)}, {16*WSZ}")
    a(f"s_lshl_b32 s{t0}, {sr(sP)}, 12")
    a(f"s_add_u32 {sr(sWO)}, {sr(sWO)}, s{t0}")
    sWS_ = 47
    sM1 = t4
    sMASK = 101
    sLN2, sLV = 101, 42
    def dequant(Q, P, off, wr):
        RS, RZ, RA = P, P+2, P+4
        for c in range(4):
            if c & 1 == 0:
                a(f"v_lshlrev_b32 v{SP+c}, 16, v{RS+c//2}")
                a(f"v_lshlrev_b32 v{ZS+c}, 16, v{RZ+c//2}")
            else:
                a(f"v_and_b32 v{SP+c}, 0xffff0000, v{RS+c//2}")
                a(f"v_and_b32 v{ZS+c}, 0xffff0000, v{RZ+c//2}")
        for c in range(4): a(f"v_mul_f32 v{ZS+c}, -v{ZS+c}, v{SP+c}")
        for c in range(4): a(f"v_mul_f32 v{SP+c}, {sr(sK24)}, v{SP+c}")
        for i in range(8):
            if i & 1 == 0: a(f"v_lshlrev_b32 v{AF+i}, 16, v{RA+i//2}")
            else: a(f"v_and_b32 v{AF+i}, 0xffff0000, v{RA+i//2}")
        for c in range(4):
            for i in range(8):
                a(f"v_fma_mix_f32 v{T+i}, v{Q+4*i+c}, v{SP+c}, v{ZS+c} op_sel_hi:[1,0,0]")
            for i in range(8):
                a(f"v_mul_f32 v{T+i}, v{T+i}, v{AF+i}")
            for i in range(0, 8, 2):
                a(f"v_cvt_pk_bf16_f32 v{OUT+4*c+i//2}, v{T+i}, v{T+i+1}")
            a(f"ds_write_b128 v{wr[c]}, {vr(OUT+4*c,4)} offset:{off}")
    seq = ['SNAP'] + ['QA']*11 + ['X0']*8
    def vm(tag, txt):
        a(txt); seq.append(tag)
    def wait_vm(tag, extra=""):
        idx = max(i for i, t in enumerate(seq) if t == tag)
        n = len(seq) - 1 - idx
        a(f"s_waitcnt vmcnt({min(n,63)}) {extra}".rstrip())
    PB = 0
    vrbA, vrbB = 93, 94
    vwB = [109, 110, 111, 95]
    a(f"v_add_u32 v{vrbA}, s{t0}, v{vWL}")
    a(f"v_add_u32 v{vrbA}, {WOFF}, v{vrbA}")
    a(f"v_add_u32 v{vrbB}, {STG - WOFF}, v{vrbA}")
    for i in range(4): a(f"v_add_u32 v{vwB[i]}, {STG - WOFF}, v{vw[i]}")
    def publish(which):
        rb = vrbA if which == 'A' else vrbB
        for j in range(4):
            a(f"ds_read_b128 {vr(PB+j*4,4)}, v{rb} offset:{j*1024}")
        a(f"s_add_u32 s{t1}, {sr(sG0)}, {0 if which == 'A' else 1}")
        a(f"s_lshl_b32 s{t1}, s{t1}, 14")
        a(f"s_add_u32 s{t1}, s{t1}, {sr(sWO)}")
        for j in range(4):
            a(f"s_waitcnt lgkmcnt({3-j})")
            vm('ST'+which, f"buffer_store_dwordx4 {vr(PB+j*4,4)}, v{vWL}, {sr(S_W,4)}, s{t1} offen offset:{j*1024} {o.pubflags}")
    def gcalc(t, dst):
        if t < 2: a(f"s_add_u32 s{dst}, {sr(sG0)}, {t}")
        else:
            j = t - 1 if t <= 8 else t - 8
            a(f"s_add_u32 s{dst}, {sr(sMT)}, {j}")
            a(f"s_and_b32 s{dst}, s{dst}, 7")
            a(f"s_lshl_b32 s{dst}, s{dst}, 1")
            if t >= 9: a(f"s_add_u32 s{dst}, s{dst}, 1")
    def x_dma_t(t):
        gcalc(t, t1)
        a(f"s_lshl_b32 s{sXS}, s{t1}, 7")
        a(f"s_add_u32 s{sXS}, s{sXS}, {sr(sXO)}")
        for j in range(8):
            if j % 4 == 0:
                a(f"s_add_u32 m0, {sr(sXL)}, {(t%3)*SLOT + (j//4)*4096}")
                a("s_nop 0")
            vm(f'X{t}', f"buffer_load_dwordx4 v{XV[j]}, {sr(S_X,4)}, s{sXS} offen offset:{(j%4)*1024} {o.xflags} lds")
    vDEL = 108
    def refresh_issue():
        a("s_mov_b64 exec, 0xff")
        vm('RF', f"buffer_load_dword v{vCUR}, v{vFA}, {sr(S_W,4)}, s{sFO} offen sc1")
        a("s_mov_b64 exec, -1")
    def refresh_finish():
        a(f"v_sub_u32 v{vDEL}, v{vCUR}, v{vSNAP}")
        a("s_nop 1")
    def need(t):
        if t < 2: return
        level = 1 if t <= 8 else 2
        j = t - 1 if t <= 8 else t - 8
        a(f"s_add_u32 s{sLN2}, {sr(sMT)}, {j}"); a(f"s_and_b32 s{sLN2}, s{sLN2}, 7")
        a(f"s_mov_b32 s{t2}, 0")
        a.lab(f"L_need{t}")
        a(f"v_readlane_b32 s{t3}, v{vDEL}, s{sLN2}")
        a("s_nop 3")
        a(f"s_cmp_ge_u32 s{t3}, {level}")
        a(f"s_cbranch_scc1 L_nok{t}")
        a(f"s_add_u32 s{t2}, s{t2}, 1")
        a(f"s_cmp_lt_u32 s{t2}, {o.spin}")
        a(f"s_cbranch_scc0 L_nok{t}")
        a("s_mov_b64 exec, 0xff")
        a(f"buffer_load_dword v{vCUR}, v{vFA}, {sr(S_W,4)}, s{sFO} offen sc1")
        a("s_mov_b64 exec, -1")
        a("s_waitcnt vmcnt(0)")
        refresh_finish()
        a(f"s_branch L_need{t}")
        a.lab(f"L_nok{t}")
    def w_dma_t(t):
        need(t)
        w_dma_nocheck(t)
    def w_dma_nocheck(t):
        gcalc(t, t1)
        a(f"s_lshl_b32 s{sWS_}, s{t1}, 14")
        a(f"s_add_u32 s{sWS_}, s{sWS_}, {sr(sWO)}")
        a(f"s_lshl_b32 s{t0}, {sr(sP)}, 12")
        a(f"s_add_u32 m0, s{t0}, {(t%3)*SLOT + WOFF}")
        a("s_nop 0")
        for j in range(4):
            vm(f'W{t}', f"buffer_load_dwordx4 v{vWL}, {sr(S_W,4)}, s{sWS_} offen offset:{j*1024} {o.wflags} lds")
    def flag_store(inc, cond_sgpr_is_set):
        a(f"s_lshl_b32 s{t2}, {sr(sMT)}, 7")
        a(f"s_add_u32 s{t2}, s{t2}, s{sFO}")
        a(f"s_cmp_eq_u32 s{t3}, 1")
        a(f"s_cselect_b32 s{t2}, s{t2}, 0x7ff00000")
        a(f"v_readlane_b32 s{t1}, v{vSNAP}, {sr(sMT)}")
        a("s_nop 3")
        a(f"s_add_u32 s{t1}, s{t1}, {inc}")
        a(f"v_mov_b32 v{x[2]}, s{t1}")
        a(f"v_mov_b32 v{x[3]}, 0")
        a("s_mov_b64 exec, 1")
        vm('FL', f"buffer_store_dword v{x[2]}, v{x[3]}, {sr(S_W,4)}, s{t2} offen sc1")
        a("s_mov_b64 exec, -1")
    qb = []
    def qb_prepare():
        for i in range(8):
            qb.append(('q', i))
        qb.append(('s',)); qb.append(('z',)); qb.append(('a',))
    def qb_issue(n):
        for _ in range(n):
            if not qb: return
            k = qb.pop(0)
            if k[0] == 'q':
                a(f"s_add_u32 s{t1}, s{sQB}, {k[1]*N*4}")
                vm('QB', f"buffer_load_dwordx4 {vr(QB_+4*k[1],4)}, v{vq}, {sr(S_Q,4)}, s{t1} offen {o.qflags}")
            elif k[0] == 's': vm('QB', f"buffer_load_dwordx2 {vr(PB_,2)}, v{vp}, {sr(S_S,4)}, s{sPB_} offen")
            elif k[0] == 'z': vm('QB', f"buffer_load_dwordx2 {vr(PB_+2,2)}, v{vp}, {sr(S_Z,4)}, s{sPB_} offen")
            else: vm('QB', f"buffer_load_dwordx4 {vr(PB_+4,4)}, v{va}, {sr(S_A,4)}, s{sAB} offen")
    qb_prepare()
    def barrier(e):
        if o.estamp and e >= 1:
            a("s_waitcnt lgkmcnt(0)")
            a(f"v_writelane_b32 v255, s60, {e-1}")
            a(f"v_writelane_b32 v255, s62, {16+e-1}")
        a("s_barrier")
        if o.estamp:
            a("s_memrealtime s[60:61]")
            a("s_memtime s[62:63]")
    if o.qbearly: qb_issue(11)
    wait_vm('QA')
    stamp(1)
    dequant(QA, PA, 0, vw)
    wait_vm('X0', "lgkmcnt(0)")
    barrier(0)
    stamp(5)
    if not o.qbearly: qb_issue(11)
    publish('A')
    x_dma_t(1)
    def flagA():
        wait_vm('STA')
        a(f"v_mov_b32 v{x[1]}, {CNT}")
        a(f"v_mov_b32 v{x[2]}, 1")
        a("s_mov_b64 exec, 1")
        a(f"ds_add_rtn_u32 v{x[3]}, v{x[1]}, v{x[2]}")
        a("s_waitcnt lgkmcnt(0)")
        a("s_mov_b64 exec, -1")
        a(f"v_readfirstlane_b32 s{t3}, v{x[3]}")
        a("s_nop 3")
        a(f"s_cmp_eq_u32 s{t3}, 3")
        a(f"s_cselect_b32 s{t3}, 1, 0")
        flag_store(1, None)
        stamp(3)
    if o.bfirst:
        wait_vm('QB')
        dequant(QB_, PB_, 0, vwB)
        flagA()
    else:
        flagA()
        wait_vm('QB')
        dequant(QB_, PB_, 0, vwB)
    x_dma_t(2)
    if o.rf0:
        refresh_issue()
        wait_vm('RF', "lgkmcnt(0)")
        refresh_finish()
    else:
        wait_vm('X1', "lgkmcnt(0)")
    barrier(1)
    w_dma_t(2)
    if o.w3early:
        a(f"s_add_u32 s{sLN2}, {sr(sMT)}, 2"); a(f"s_and_b32 s{sLN2}, s{sLN2}, 7")
        a(f"v_readlane_b32 s{t3}, v{vDEL}, s{sLN2}")
        a("s_mov_b32 s99, 0")
        a("s_nop 2")
        a(f"s_cmp_ge_u32 s{t3}, 1")
        a("s_cbranch_scc0 L_w3late")
        a("s_mov_b32 s99, 1")
        sv = list(seq)
        w_dma_nocheck(3)
        seq[:] = sv
        a.lab("L_w3late")
    publish('B')
    x_dma_t(3)
    wait_vm('W2')
    barrier(2)
    for e in range(2, NSTEP - 1):
        if e == 2:
            if o.w3early:
                a("s_cmp_eq_u32 s99, 1")
                a("s_cbranch_scc1 L_w3done")
                w_dma_t(3)
                a.lab("L_w3done")
            else:
                w_dma_t(3)
        if e == o.fbe:
            a(f"s_cmp_eq_u32 {sr(sWV)}, 4")
            a(f"s_cselect_b32 s{t3}, 1, 0")
            flag_store(2, None)
        if e == o.rfe: refresh_issue()
        if e + 2 < NSTEP:
            w_dma_t(e + 2)
            x_dma_t(e + 2)
        wait_vm(f'X{e+1}' if e != 2 else 'W3')
        if e == o.rfe:
            wait_vm('RF')
            refresh_finish()
        barrier(e + 1)
    if o.stamp:
        a(f"s_cmp_eq_u32 {sr(sWV)}, 4")
        a("s_cbranch_scc0 L_end")
        if o.estamp:
            a("s_waitcnt lgkmcnt(0)")
            a("v_writelane_b32 v255, s60, 15")
            a("v_writelane_b32 v255, s62, 31")
            a(f"s_lshl_b32 s{t0}, s2, 8")
            a(f"s_add_u32 s{t0}, s{t0}, {129<<20}")
            a(f"s_add_u32 s96, s82, s{t0}")
            a(f"s_addc_u32 s97, s83, 0")
            a(f"v_lshlrev_b32 v254, 2, v{vL}")
            a("global_store_dword v254, v255, s[96:97]")
        dump_stamps((1, 3, 5))
    a.lab("L_end")
    a("s_endpgm")
    if o.helper:
        a.lab("L_helper")
        a(f"s_load_dwordx2 {sr(KA,2)}, s[0:1], 0")
        a("v_lshrrev_b32 v1, 6, v0")
        a("v_and_b32 v0, 63, v0")
        a(f"v_readfirstlane_b32 {sr(sWV)}, v1")
        a(f"s_sub_u32 s{t0}, s2, {NWG}")
        a(f"s_and_b32 {sr(sMT)}, s{t0}, 7")
        a(f"s_lshr_b32 s{t2}, s{t0}, 3")
        a(f"s_lshl_b32 s{t1}, {sr(sMT)}, 8")
        a(f"s_lshl_b32 s{t2}, s{t2}, 6")
        a(f"s_add_u32 s{t1}, s{t1}, s{t2}")
        a(f"s_lshl_b32 s{t3}, {sr(sWV)}, 3")
        a(f"s_add_u32 s{t1}, s{t1}, s{t3}")
        a(f"s_lshl_b32 s42, s{t1}, 11")
        a(f"s_lshl_b32 {sr(sG0)}, {sr(sMT)}, 1")
        a("v_lshrrev_b32 v3, 3, v0")
        a("v_and_b32 v4, 7, v0")
        a("v_lshlrev_b32 v4, 4, v4")
        a("v_lshl_add_u32 v3, v3, 11, v4")
        a("s_waitcnt lgkmcnt(0)")
        srd(S_X, KA, M*K*2)
        for t in range(o.hstart, NSTEP):
            if t < 2: a(f"s_add_u32 s{t0}, {sr(sG0)}, {t}")
            else:
                j = t - 1 if t <= 8 else t - 8
                a(f"s_add_u32 s{t0}, {sr(sMT)}, {j}"); a(f"s_and_b32 s{t0}, s{t0}, 7"); a(f"s_lshl_b32 s{t0}, s{t0}, 1")
                if t >= 9: a(f"s_add_u32 s{t0}, s{t0}, 1")
            a(f"s_lshl_b32 s{t0}, s{t0}, 7"); a(f"s_add_u32 s{t0}, s{t0}, s42")
            a(f"buffer_load_dwordx4 v[8:11], v3, {sr(S_X,4)}, s{t0} offen")
            if o.hdepth: a(f"s_waitcnt vmcnt({o.hdepth-1})")
        a("s_endpgm")
    a.raw('.section .rodata,"a"'); a.raw(".p2align 6"); a.raw(f".amdhsa_kernel {KNAME}")
    for d in ["next_free_vgpr 256", "next_free_sgpr 102", "accum_offset 256", "group_segment_fixed_size 0", "kernarg_size 64",
              "user_sgpr_count 2", "user_sgpr_kernarg_segment_ptr 1", "system_sgpr_workgroup_id_x 1"]:
        a.raw("  .amdhsa_" + d)
    a.raw(".end_amdhsa_kernel")
    return "\n".join(hdr) + "\n" + a.text()

if __name__ == "__main__":
    p = argparse.ArgumentParser()
    p.add_argument("-o", default="h.s")
    p.add_argument("--mfma", type=int, default=16)
    p.add_argument("--stamp", type=int, default=0)
    p.add_argument("--estamp", type=int, default=0)
    p.add_argument("--prio", type=int, default=0)
    p.add_argument("--rstride", type=int, default=2)
    p.add_argument("--stflags", default="nt")
    p.add_argument("--qflags", default="nt")
    p.add_argument("--xflags", default="")
    p.add_argument("--helper", type=int, default=1)
    p.add_argument("--hstart", type=int, default=0)
    p.add_argument("--spin", type=int, default=4000)
    p.add_argument("--nomfma", type=int, default=0)
    p.add_argument("--qbearly", type=int, default=1)
    p.add_argument("--tight", type=int, default=1)
    p.add_argument("--w3early", type=int, default=0)
    p.add_argument("--rf0", type=int, default=1)
    p.add_argument("--bfirst", type=int, default=0)
    p.add_argument("--fbe", type=int, default=3)
    p.add_argument("--rfe", type=int, default=6)
    p.add_argument("--border", type=int, default=1)
    p.add_argument("--nopub", type=int, default=0)
    p.add_argument("--pubflags", default="sc1")
    p.add_argument("--wflags", default="sc1")
    p.add_argument("--dbgout", type=int, default=0)
    p.add_argument("--s1", type=int, default=1)
    p.add_argument("--hdepth", type=int, default=2)
    p.add_argument("--dbgp", type=int, default=0)
    p.add_argument("--flag", type=int, default=1)
    p.add_argument("--cstride", type=int, default=2)
    p.add_argument("--sleep", type=int, default=4)
    o = p.parse_args()
    o.pubflags = o.pubflags.replace('+', ' '); o.wflags = o.wflags.replace('+', ' ')
    open(o.o, "w").write(gen(o))
```

```python
import sys, argparse

KNAME = "standalone__weight_only_int_omniquant__prompt_kernel"
M, K, N = 2048, 1024, 3584
TM, TN, KS = 256, 128, 64
NSTEP = K // KS
NWG = (M // TM) * (N // TN)

class A:
    def __init__(s): s.l = []
    def __call__(s, x): s.l.append("    " + x)
    def lab(s, x): s.l.append(x + ":")
    def raw(s, x): s.l.append(x)
    def text(s): return "\n".join(s.l) + "\n"

def vr(b, n=1): return f"v{b}" if n == 1 else f"v[{b}:{b+n-1}]"
def sr(b, n=1): return f"s{b}" if n == 1 else f"s[{b}:{b+n-1}]"

def gen(o):
    a = A()
    SLOT = 49152
    WOFF = 32768
    WSZ = 16384
    STG = SLOT + WOFF
    CNT = 3 * SLOT
    LDS = CNT + 64
    M32 = (o.mfma == 32)
    S_X, S_Q, S_S, S_Z, S_A, S_O, S_W, S_D = 4, 8, 12, 16, 20, 24, 92, 96
    S_W, S_D = 88, 92
    sMT, sNT, sWV, sG0 = 28, 29, 30, 31
    sT = 32
    sXO, sXL = 33, 34
    t0, t1, t2, t3, t4 = 35, 36, 37, 38, 39
    sK24 = 40
    sP, sU = 41, 42
    sWO = 43
    sC = 44
    sFO = 100
    sST = 48
    sWS = 64
    sDBG = 66
    KA = 68
    sCY = 84
    hdr = [f"; @launch grid=({256 if o.helper else NWG},1,1) block=(512,1,1) lds={LDS}"]
    a.raw('.amdgcn_target "amdgcn-amd-amdhsa--gfx950"')
    a.raw(".text"); a.raw(f".globl {KNAME}"); a.raw(".p2align 8"); a.raw(f".type {KNAME},@function")
    a.lab(KNAME)
    def stamp(i):
        if o.stamp: a(f"s_memrealtime {sr(sST + 2*i, 2)}")
    def dbg_out(pairs):
        a("s_waitcnt lgkmcnt(0)")
        srd(S_D, KA+12, 256)
        a("s_mov_b64 exec, 1")
        a("v_mov_b32 v1, 0")
        for (idx, sg, inv) in pairs:
            if inv: a(f"s_not_b32 s{t0}, s{sg}")
            else: a(f"s_mov_b32 s{t0}, s{sg}")
            a(f"v_mov_b32 v2, s{t0}")
            a(f"buffer_atomic_umax v2, v1, {sr(S_D,4)}, 0 offen offset:{idx*4}")
            a("s_nop 1")
    def dump_stamps(idxs, extra=None):
        if o.dbgout:
            prs = []
            for i in idxs:
                prs.append((i, sST+2*i, i == 0))
                prs.append((8+i, sST+2*i, True))
            dbg_out(prs)
            return
        a("s_waitcnt lgkmcnt(0)")
        a(f"s_lshl_b32 s{t0}, s2, 6")
        a(f"s_add_u32 s{t0}, s{t0}, {128<<20}")
        a(f"s_add_u32 {sr(sWS)}, s82, s{t0}")
        a(f"s_addc_u32 {sr(sWS+1)}, s83, 0")
        a("v_mov_b32 v1, 0")
        if extra: extra()
        for i in idxs:
            a(f"v_mov_b32 v2, {sr(sST+2*i)}")
            a(f"v_mov_b32 v3, {sr(sST+2*i+1)}")
            a(f"global_store_dwordx2 v1, v[2:3], {sr(sWS,2)} offset:{i*8}")
            a("s_nop 1")
    def srd(b, p, size):
        a(f"s_mov_b32 s{b}, s{p}")
        a(f"s_and_b32 s{b+1}, s{p+1}, 0xffff")
        a(f"s_mov_b32 s{b+2}, {size}")
        a(f"s_mov_b32 s{b+3}, 0x20000")
    if o.helper:
        a("s_cmp_ge_u32 s2, 256")
        a("s_cbranch_scc1 L_end")
        a(f"s_cmp_ge_u32 s2, {NWG}")
        a("s_cbranch_scc1 L_helper")
    else:
        a(f"s_cmp_ge_u32 s2, {NWG}")
        a("s_cbranch_scc1 L_end")
    stamp(0)
    a(f"s_load_dwordx4 {sr(KA,4)}, s[0:1], 0")
    a(f"s_load_dwordx4 {sr(KA+4,4)}, s[0:1], 16")
    a(f"s_load_dwordx4 {sr(KA+8,4)}, s[0:1], 32")
    a(f"s_load_dwordx4 {sr(KA+12,4)}, s[0:1], 48")
    a("v_lshrrev_b32 v1, 6, v0")
    a("v_and_b32 v0, 63, v0")
    a(f"v_readfirstlane_b32 {sr(sWV)}, v1")
    a(f"s_and_b32 s{t0}, s2, 7")
    a(f"s_lshr_b32 s{t1}, s2, 3")
    a(f"s_mul_i32 s{t0}, s{t0}, 28")
    a(f"s_add_u32 s{t0}, s{t0}, s{t1}")
    a(f"s_lshr_b32 {sr(sNT)}, s{t0}, 3")
    a(f"s_and_b32 {sr(sMT)}, s{t0}, 7")
    a(f"s_lshl_b32 {sr(sG0)}, {sr(sMT)}, 1")
    a(f"s_and_b32 {sr(sP)}, {sr(sWV)}, 3")
    vL = 254
    a(f"v_mov_b32 v{vL}, v0")
    if o.layout:
        a(f"s_cmp_lt_u32 {sr(sWV)}, 4")
        a("s_cbranch_scc1 L_consumer")
        a.raw("@@CONS_BEGIN")
        a.lab("L_consumer")
    else:
        a(f"s_cmp_ge_u32 {sr(sWV)}, 4")
        a("s_cbranch_scc1 L_loader")

    XF = [128, 144]; WF = [160, 192]
    B = 224
    vLANE = vL
    vXA = [B+1, B+2, B+3, B+4]; vWA = [B+5, B+6, B+7, B+8]
    vT = [B+9+i for i in range(12)]
    if o.prio: a(f"s_setprio {o.prio}")
    a(f"v_mov_b32 v{vT[0]}, {CNT}")
    a(f"v_mov_b32 v{vT[1]}, 0")
    a(f"ds_write_b32 v{vT[0]}, v{vT[1]}")
    lo = vT[5]; hi = vT[6]; f = vT[7]; tt = vT[8]
    if M32:
        a(f"v_and_b32 v{lo}, 31, v{vLANE}")
        a(f"v_lshrrev_b32 v{hi}, 5, v{vLANE}")
        a(f"v_bfe_u32 v{f}, v{vLANE}, 1, 3")
        a(f"v_xor_b32 v{tt}, v{hi}, v{f}")
        a(f"v_lshlrev_b32 v{tt}, 4, v{tt}")
        a(f"v_lshl_add_u32 v{vXA[0]}, v{lo}, 7, v{tt}")
        a(f"s_lshl_b32 s{t0}, {sr(sWV)}, 13")
        a(f"v_add_u32 v{vXA[0]}, s{t0}, v{vXA[0]}")
        a(f"v_xor_b32 v{vXA[1]}, 32, v{vXA[0]}")
        a(f"v_xor_b32 v{vXA[2]}, 64, v{vXA[0]}")
        a(f"v_xor_b32 v{vXA[3]}, 96, v{vXA[0]}")
        a(f"v_bfe_u32 v{tt}, v{vLANE}, 4, 1")
        a(f"v_xor_b32 v{f}, v{f}, v{tt}")
        a(f"v_xor_b32 v{tt}, v{hi}, v{f}")
        a(f"v_lshlrev_b32 v{tt}, 4, v{tt}")
        a(f"v_lshl_add_u32 v{vWA[0]}, v{lo}, 7, v{tt}")
        a(f"v_add_u32 v{vWA[0]}, {WOFF}, v{vWA[0]}")
        a(f"v_xor_b32 v{vWA[1]}, 32, v{vWA[0]}")
        a(f"v_xor_b32 v{vWA[2]}, 64, v{vWA[0]}")
        a(f"v_xor_b32 v{vWA[3]}, 96, v{vWA[0]}")
    else:
        a(f"v_and_b32 v{lo}, 15, v{vLANE}")
        a(f"v_lshrrev_b32 v{hi}, 4, v{vLANE}")
        a(f"v_bfe_u32 v{f}, v{vLANE}, 1, 3")
        a(f"v_xor_b32 v{tt}, v{hi}, v{f}")
        a(f"v_lshlrev_b32 v{tt}, 4, v{tt}")
        a(f"v_lshl_add_u32 v{vWA[0]}, v{lo}, 7, v{tt}")
        a(f"s_lshl_b32 s{t0}, {sr(sWV)}, 13")
        a(f"v_add_u32 v{vXA[0]}, s{t0}, v{vWA[0]}")
        a(f"v_xor_b32 v{vXA[1]}, 64, v{vXA[0]}")
        a(f"v_add_u32 v{vWA[0]}, {WOFF}, v{vWA[0]}")
        a(f"v_xor_b32 v{vWA[1]}, 16, v{vWA[0]}")
        a(f"v_xor_b32 v{vWA[2]}, 64, v{vWA[0]}")
        a(f"v_xor_b32 v{vWA[3]}, 0x50, v{vWA[0]}")
    a("s_waitcnt lgkmcnt(0)")
    sOO = 42
    E = vT
    srd(S_O, KA+10, M*N*2)
    a(f"s_lshl_b32 s{t0}, {sr(sWV)}, 14")
    a(f"s_add_u32 s{t0}, s{t0}, {SLOT}")
    if M32:
        a(f"v_and_b32 v{E[0]}, 31, v{vLANE}")
        a(f"v_lshrrev_b32 v{E[1]}, 5, v{vLANE}")
    else:
        a(f"v_and_b32 v{E[0]}, 15, v{vLANE}")
        a(f"v_lshrrev_b32 v{E[1]}, 4, v{vLANE}")
    a(f"v_and_b32 v{E[2]}, 7, v{vLANE}")
    a(f"v_xor_b32 v{E[2]}, v{E[2]}, v{E[1]}")
    a(f"v_lshlrev_b32 v{E[2]}, 4, v{E[2]}")
    a(f"v_lshl_add_u32 v{E[3]}, v{E[0]}, 8, v{E[2]}")
    a(f"v_add_u32 v{E[3]}, s{t0}, v{E[3]}")
    a(f"v_xor_b32 v{E[4]}, 64, v{E[3]}")
    if M32:
        a(f"v_xor_b32 v{E[5]}, 32, v{E[3]}")
        a(f"v_xor_b32 v{E[6]}, 96, v{E[3]}")
    a(f"v_lshrrev_b32 v{E[7]}, 4, v{vLANE}")
    a(f"v_and_b32 v{E[8]}, 15, v{vLANE}")
    a(f"v_xor_b32 v{E[9]}, v{E[8]}, v{E[7]}")
    a(f"v_lshlrev_b32 v{E[9]}, 4, v{E[9]}")
    a(f"v_lshl_add_u32 v{E[9]}, v{E[7]}, 8, v{E[9]}")
    a(f"v_add_u32 v{E[9]}, s{t0}, v{E[9]}")
    a(f"v_xor_b32 v{E[10]}, 64, v{E[9]}")
    a(f"s_mov_b32 s{t1}, {N*2}")
    a(f"v_mul_lo_u32 v{E[11]}, s{t1}, v{E[7]}")
    a(f"v_lshl_add_u32 v{E[11]}, v{E[8]}, 4, v{E[11]}")
    a(f"s_lshl_b32 s{t0}, {sr(sMT)}, 8")
    a(f"s_lshl_b32 s{t1}, {sr(sWV)}, 6")
    a(f"s_add_u32 s{t0}, s{t0}, s{t1}")
    a(f"s_mul_i32 s{t0}, s{t0}, {N*2}")
    a(f"s_lshl_b32 s{t1}, {sr(sNT)}, 8")
    a(f"s_add_u32 s{sOO}, s{t0}, s{t1}")
    for i in range(128): a(f"v_mov_b32 v{i}, 0")
    for i in range(XF[1], XF[1]+16): a(f"v_mov_b32 v{i}, 0")
    for i in range(WF[1], WF[1]+32): a(f"v_mov_b32 v{i}, 0")
    a(f"s_mov_b32 {sr(sT)}, 0")
    a(f"s_mov_b32 s{sC}, {SLOT}"); a(f"s_mov_b32 s{sC+1}, {-2*SLOT & 0xffffffff}")
    a(f"s_mov_b32 s{sC+2}, 0")
    if o.stamp:
        a(f"s_memtime {sr(sCY,2)}")
    def phase(h, sread, smma, do_read=True, do_mma=True, late=()):
        reads = []
        if do_read:
            if M32:
                for ks in range(2):
                    for nb in range(4):
                        reads.append(f"ds_read_b128 {vr(WF[sread]+(ks*4+nb)*4,4)}, v{vWA[h*2+ks]} offset:{nb*4096}")
                        if nb < 2:
                            reads.append(f"ds_read_b128 {vr(XF[sread]+(ks*2+nb)*4,4)}, v{vXA[h*2+ks]} offset:{nb*4096}")
            else:
                for nb in range(8):
                    reads.append(f"ds_read_b128 {vr(WF[sread]+nb*4,4)}, v{vWA[h*2+(nb&1)]} offset:{nb*2048}")
                    if nb < 4:
                        reads.append(f"ds_read_b128 {vr(XF[sread]+nb*4,4)}, v{vXA[h]} offset:{nb*2048}")
        mm = []
        if do_mma:
            if M32:
                for ks in range(2):
                    for nb in range(4):
                        for mb in range(2):
                            c = (mb*4+nb)*16
                            mm.append(f"v_mfma_f32_32x32x16_bf16 {vr(c,16)}, {vr(WF[smma]+(ks*4+nb)*4,4)}, {vr(XF[smma]+(ks*2+mb)*4,4)}, {vr(c,16)}")
            else:
                for nb in range(8):
                    for mb in range(4):
                        c = (mb*8+nb)*4
                        mm.append(f"v_mfma_f32_16x16x32_bf16 {vr(c,4)}, {vr(WF[smma]+nb*4,4)}, {vr(XF[smma]+mb*4,4)}, {vr(c,4)}")
        ri = 0
        rstride = o.rstride if not M32 else 1
        late = list(late)
        for i, m in enumerate(mm):
            if not o.nomfma: a(m)
            if ri < len(reads) and (i % rstride == 0):
                a(reads[ri]); ri += 1
            elif ri >= len(reads) and late:
                a(late.pop(0))
        while ri < len(reads):
            a(reads[ri]); ri += 1
        for x_ in late: a(x_)
    nxa = 4 if M32 else 2
    a.lab("L_cloop")
    a("s_barrier")
    if o.tight:
        sc = [f"s_add_u32 {sr(sT)}, {sr(sT)}, 1", f"s_add_u32 s{sC+2}, s{sC+2}, 1", f"s_cmp_eq_u32 s{sC+2}, 3",
              f"s_cselect_b32 s{t1}, s{sC+1}, s{sC}", f"s_cselect_b32 s{sC+2}, 0, s{sC+2}"]
        phase(0, 0, 1, late=sc)
        a("s_waitcnt lgkmcnt(0)")
        va = [f"v_add_u32 v{vXA[i]}, s{t1}, v{vXA[i]}" for i in range(nxa)] + [f"v_add_u32 v{vWA[i]}, s{t1}, v{vWA[i]}" for i in range(4)]
        phase(1, 1, 0, late=va + [f"s_cmp_lt_u32 {sr(sT)}, {NSTEP}", "s_waitcnt lgkmcnt(0)"])
        a("s_cbranch_scc1 L_cloop")
    else:
        phase(0, 0, 1)
        a("s_waitcnt lgkmcnt(0)")
        phase(1, 1, 0)
        a(f"s_add_u32 {sr(sT)}, {sr(sT)}, 1")
        a(f"s_add_u32 s{sC+2}, s{sC+2}, 1")
        a(f"s_cmp_eq_u32 s{sC+2}, 3")
        a(f"s_cselect_b32 s{t1}, s{sC+1}, s{sC}")
        a(f"s_cselect_b32 s{sC+2}, 0, s{sC+2}")
        a("s_waitcnt lgkmcnt(0)")
        for i in range(nxa): a(f"v_add_u32 v{vXA[i]}, s{t1}, v{vXA[i]}")
        for i in range(4): a(f"v_add_u32 v{vWA[i]}, s{t1}, v{vWA[i]}")
        a(f"s_cmp_lt_u32 {sr(sT)}, {NSTEP}")
        a("s_cbranch_scc1 L_cloop")
    assert not M32
    TPL = [128+4*i for i in range(4)] + [160+4*i for i in range(8)]
    tp = 0
    def nexttmp():
        nonlocal tp
        r = TPL[tp % len(TPL)]
        tp += 1
        return r
    ldsq = []
    def Ml(mb):
        return [f"v_mfma_f32_16x16x32_bf16 {vr((mb*8+nb)*4,4)}, {vr(WF[1]+nb*4,4)}, {vr(XF[1]+mb*4,4)}, {vr((mb*8+nb)*4,4)}" for nb in range(8)]
    def Wl(mb):
        out = []
        for P in range(4):
            r = nexttmp()
            for b in range(2):
                c = (mb*8+2*P+b)*4
                out.append((None, f"v_cvt_pk_bf16_f32 v{r+2*b}, v{c}, v{c+1}"))
                out.append((None, f"v_cvt_pk_bf16_f32 v{r+2*b+1}, v{c+2}, v{c+3}"))
            var = E[3] if (P & 1) == 0 else E[4]
            out.append((('W', mb, P), f"ds_write_b128 v{var}, {vr(r,4)} offset:{(P>>1)*128 + mb*4096}"))
        return out
    def Rl(mb):
        out = []
        for t in range(4):
            tg = mb*4 + t
            var = E[9] if (tg & 1) == 0 else E[10]
            out.append((('R', mb, t), f"ds_read_b128 {vr(mb*32+t*4,4)}, v{var} offset:{tg*1024}"))
        return out
    def emit(lst):
        for tag, txt in lst:
            a(txt)
            if tag: ldsq.append(tag)
    def mix(mm, lst):
        lst = list(lst); n = len(mm)
        per = (len(lst) + n - 1) // n
        for m in mm:
            if not o.nomfma: a(m)
            emit(lst[:per]); lst = lst[per:]
        emit(lst)
    def Sb(mb):
        for t in range(4):
            n = len(ldsq) - 1 - ldsq.index(('R', mb, t))
            a(f"s_waitcnt lgkmcnt({min(n,15)})")
            a(f"buffer_store_dwordx4 {vr(mb*32+t*4,4)}, v{E[11]}, {sr(S_O,4)}, s{sOO} offen {o.stflags}")
            a(f"s_add_u32 s{sOO}, s{sOO}, {4*N*2}")
    for m in Ml(0) + Ml(1):
        if not o.nomfma: a(m)
    mix(Ml(2), Wl(0))
    mix(Ml(3), Wl(1) + Rl(0))
    stamp(2)
    if o.stamp: a(f"s_memtime {sr(sCY+2,2)}")
    emit(Wl(2)); emit(Rl(1)); Sb(0)
    emit(Wl(3)); emit(Rl(2)); Sb(1)
    emit(Rl(3)); Sb(2); Sb(3)
    if o.stamp:
        a("s_waitcnt vmcnt(0)")
        stamp(4)
        a(f"s_cmp_eq_u32 {sr(sWV)}, 0")
        a("s_cbranch_scc0 L_end")
        def extra():
            a(f"s_sub_u32 s{sCY+2}, s{sCY+2}, s{sCY}")
            a(f"s_subb_u32 s{sCY+3}, s{sCY+3}, s{sCY+1}")
            a(f"v_mov_b32 v2, s{sCY+2}"); a(f"v_mov_b32 v3, s{sCY+3}")
            a(f"global_store_dwordx2 v1, v[2:3], {sr(sWS,2)} offset:56"); a("s_nop 1")
        dump_stamps((0, 2, 4), extra)
    a("s_endpgm")

    if o.layout: a.raw("@@CONS_END")
    a.lab("L_loader")
    QA, QB_ = 0, 112
    PA, PB_ = 32, 144
    SP = 40; ZS = 44; AF = 48; T = 56; OUT = 64
    vq, vp, va, vo, vcq = 80, 81, 82, 83, 84
    vw = [85, 86, 87, 88]
    x = [89, 90, 91, 92]
    XV = [96+j for j in range(8)]
    vWL = 104
    vFA, vSNAP, vCUR = 105, 106, 107
    FLAGB = 8 << 20
    sXS, sM0 = 45, 46
    a(f"v_lshrrev_b32 v{x[0]}, 5, v{vL}")
    a(f"v_and_b32 v{vcq}, 31, v{vL}")
    a(f"s_lshl_b32 s{t0}, {sr(sP)}, 1")
    a(f"v_add_u32 v{vo}, s{t0}, v{x[0]}")
    a(f"s_mov_b32 s{t0}, {8*N*4}")
    a(f"v_mul_lo_u32 v{vq}, s{t0}, v{vo}")
    a(f"v_lshl_add_u32 v{vq}, v{vcq}, 4, v{vq}")
    a(f"s_mul_i32 s{t0}, {sr(sG0)}, {64*N*4}")
    a(f"s_lshl_b32 s{t1}, {sr(sNT)}, 9")
    a(f"s_add_u32 s{t0}, s{t0}, s{t1}")
    a(f"v_lshlrev_b32 v{vFA}, 7, v{vL}")
    a(f"s_lshl_b32 s{sFO}, {sr(sNT)}, 10")
    a(f"s_add_u32 s{sFO}, s{sFO}, {FLAGB}")
    a("s_waitcnt lgkmcnt(0)")
    srd(S_W, KA+14, FLAGB + 224*128)
    a("s_mov_b64 exec, 0xff")
    a(f"buffer_load_dword v{vSNAP}, v{vFA}, {sr(S_W,4)}, s{sFO} offen sc1")
    a("s_mov_b64 exec, -1")
    srd(S_Q, KA+2, K*N*4)
    first = [True]
    def q_issue(Q, P):
        for i in range(8):
            a(f"buffer_load_dwordx4 {vr(Q+4*i,4)}, v{vq}, {sr(S_Q,4)}, s{t0} offen {o.qflags}")
            a(f"s_add_u32 s{t0}, s{t0}, {N*4}")
        a(f"v_lshlrev_b32 v{vp}, 3, v{vcq}")
        a(f"v_lshlrev_b32 v{va}, 4, v{vo}")
        a(f"s_mul_i32 s{t2}, {sr(sG0)}, {N*2}")
        a(f"s_lshl_b32 s{t1}, {sr(sNT)}, 8")
        a(f"s_add_u32 s{t2}, s{t2}, s{t1}")
        a(f"s_lshl_b32 s{t3}, {sr(sG0)}, 7")
        srd(S_S, KA+4, 16*N*2); srd(S_Z, KA+6, 16*N*2); srd(S_A, KA+8, K*2)
        a(f"buffer_load_dwordx2 {vr(P,2)}, v{vp}, {sr(S_S,4)}, s{t2} offen")
        a(f"buffer_load_dwordx2 {vr(P+2,2)}, v{vp}, {sr(S_Z,4)}, s{t2} offen")
        a(f"buffer_load_dwordx4 {vr(P+4,4)}, v{va}, {sr(S_A,4)}, s{t3} offen")
        a(f"v_lshrrev_b32 v{x[0]}, 3, v{vL}")
        a(f"v_and_b32 v{x[1]}, 7, v{vL}")
        a(f"v_lshrrev_b32 v{x[2]}, 1, v{x[0]}")
        a(f"v_xor_b32 v{x[1]}, v{x[1]}, v{x[2]}")
        a(f"v_lshlrev_b32 v{x[1]}, 4, v{x[1]}")
        a(f"v_lshl_add_u32 v{x[1]}, v{x[0]}, 11, v{x[1]}")
        a(f"v_xor_b32 v{x[2]}, 64, v{x[1]}")
    q_issue(QA, PA)
    srd(S_X, KA, M*K*2)
    for j in range(8):
        src = x[1] if j % 2 == 0 else x[2]
        a(f"v_add_u32 v{XV[j]}, {j*16384 - 1024*(j%4)}, v{src}")
    a(f"v_lshlrev_b32 v{vWL}, 4, v{vL}")
    a(f"s_lshl_b32 s{t1}, {sr(sMT)}, 8")
    a(f"s_lshl_b32 s{t4}, {sr(sP)}, 6")
    a(f"s_add_u32 s{t1}, s{t1}, s{t4}")
    a(f"s_lshl_b32 {sr(sXO)}, s{t1}, 11")
    a(f"s_lshl_b32 {sr(sXL)}, {sr(sP)}, 13")
    def x_dma():
        for j in range(8):
            if j % 4 == 0:
                a(f"s_add_u32 m0, s{sM0}, {(j//4)*4096}")
                a("s_nop 0")
            a(f"buffer_load_dwordx4 v{XV[j]}, {sr(S_X,4)}, s{sXS} offen offset:{(j%4)*1024} {o.xflags} lds")
    a(f"s_lshl_b32 s{sXS}, {sr(sG0)}, 7")
    a(f"s_add_u32 s{sXS}, s{sXS}, {sr(sXO)}")
    a(f"s_mov_b32 s{sM0}, {sr(sXL)}")
    x_dma()
    sQB, sPB_, sAB = 97, 98, 99
    a(f"s_add_u32 s{sQB}, s{t0}, {56*N*4}")
    a(f"s_add_u32 s{sPB_}, s{t2}, {N*2}")
    a(f"s_add_u32 s{sAB}, s{t3}, 128")
    if M32:
        a(f"v_lshrrev_b32 v{x[0]}, 3, v{vcq}"); a(f"v_lshlrev_b32 v{x[0]}, 5, v{x[0]}")
        a(f"v_bfe_u32 v{x[1]}, v{vcq}, 2, 1"); a(f"v_lshl_add_u32 v{x[0]}, v{x[1]}, 4, v{x[0]}")
        a(f"v_and_b32 v{x[1]}, 1, v{vcq}"); a(f"v_lshl_add_u32 v{x[0]}, v{x[1]}, 3, v{x[0]}")
        a(f"v_bfe_u32 v{x[1]}, v{vcq}, 1, 1"); a(f"v_lshl_add_u32 v{x[0]}, v{x[1]}, 2, v{x[0]}")
    else:
        a(f"v_lshrrev_b32 v{x[0]}, 3, v{vcq}"); a(f"v_lshlrev_b32 v{x[0]}, 5, v{x[0]}")
        a(f"v_and_b32 v{x[1]}, 1, v{vcq}"); a(f"v_lshl_add_u32 v{x[0]}, v{x[1]}, 4, v{x[0]}")
        a(f"v_bfe_u32 v{x[1]}, v{vcq}, 1, 2"); a(f"v_lshl_add_u32 v{x[0]}, v{x[1]}, 2, v{x[0]}")
    for i in range(4):
        a(f"v_add_u32 v{x[1]}, {i}, v{x[0]}")
        a(f"v_bfe_u32 v{x[2]}, v{x[1]}, 1, 3")
        a(f"v_bfe_u32 v{x[3]}, v{x[1]}, 4, 1")
        a(f"v_xor_b32 v{x[2]}, v{x[2]}, v{x[3]}")
        a(f"v_xor_b32 v{x[2]}, v{x[2]}, v{vo}")
        a(f"v_lshlrev_b32 v{x[2]}, 4, v{x[2]}")
        a(f"v_lshl_add_u32 v{vw[i]}, v{x[1]}, 7, v{x[2]}")
        a(f"v_add_u32 v{vw[i]}, {WOFF}, v{vw[i]}")
    a(f"s_mov_b32 {sr(sK24)}, 0x4b800000")
    a("v_mov_b32 v108, 0")
    a(f"s_mul_i32 {sr(sWO)}, {sr(sNT)}, {16*WSZ}")
    a(f"s_lshl_b32 s{t0}, {sr(sP)}, 12")
    a(f"s_add_u32 {sr(sWO)}, {sr(sWO)}, s{t0}")
    sWS_ = 47
    sM1 = t4
    sMASK = 101
    sLN2, sLV = 101, 42
    def dequant(Q, P, off, wr):
        RS, RZ, RA = P, P+2, P+4
        for c in range(4):
            if c & 1 == 0:
                a(f"v_lshlrev_b32 v{SP+c}, 16, v{RS+c//2}")
                a(f"v_lshlrev_b32 v{ZS+c}, 16, v{RZ+c//2}")
            else:
                a(f"v_and_b32 v{SP+c}, 0xffff0000, v{RS+c//2}")
                a(f"v_and_b32 v{ZS+c}, 0xffff0000, v{RZ+c//2}")
        for c in range(4): a(f"v_mul_f32 v{ZS+c}, -v{ZS+c}, v{SP+c}")
        for c in range(4): a(f"v_mul_f32 v{SP+c}, {sr(sK24)}, v{SP+c}")
        for i in range(8):
            if i & 1 == 0: a(f"v_lshlrev_b32 v{AF+i}, 16, v{RA+i//2}")
            else: a(f"v_and_b32 v{AF+i}, 0xffff0000, v{RA+i//2}")
        for c in range(4):
            for i in range(8):
                a(f"v_fma_mix_f32 v{T+i}, v{Q+4*i+c}, v{SP+c}, v{ZS+c} op_sel_hi:[1,0,0]")
            for i in range(8):
                a(f"v_mul_f32 v{T+i}, v{T+i}, v{AF+i}")
            for i in range(0, 8, 2):
                a(f"v_cvt_pk_bf16_f32 v{OUT+4*c+i//2}, v{T+i}, v{T+i+1}")
            a(f"ds_write_b128 v{wr[c]}, {vr(OUT+4*c,4)} offset:{off}")
    seq = ['SNAP'] + ['QA']*11 + ['X0']*8
    def vm(tag, txt):
        a(txt); seq.append(tag)
    def wait_vm(tag, extra=""):
        idx = max(i for i, t in enumerate(seq) if t == tag)
        n = len(seq) - 1 - idx
        a(f"s_waitcnt vmcnt({min(n,63)}) {extra}".rstrip())
    PB = 0
    vrbA, vrbB = 93, 94
    vwB = [109, 110, 111, 95]
    a(f"v_add_u32 v{vrbA}, s{t0}, v{vWL}")
    a(f"v_add_u32 v{vrbA}, {WOFF}, v{vrbA}")
    a(f"v_add_u32 v{vrbB}, {STG - WOFF}, v{vrbA}")
    for i in range(4): a(f"v_add_u32 v{vwB[i]}, {STG - WOFF}, v{vw[i]}")
    def publish(which):
        rb = vrbA if which == 'A' else vrbB
        for j in range(4):
            a(f"ds_read_b128 {vr(PB+j*4,4)}, v{rb} offset:{j*1024}")
        a(f"s_add_u32 s{t1}, {sr(sG0)}, {0 if which == 'A' else 1}")
        a(f"s_lshl_b32 s{t1}, s{t1}, 14")
        a(f"s_add_u32 s{t1}, s{t1}, {sr(sWO)}")
        for j in range(4):
            a(f"s_waitcnt lgkmcnt({3-j})")
            vm('ST'+which, f"buffer_store_dwordx4 {vr(PB+j*4,4)}, v{vWL}, {sr(S_W,4)}, s{t1} offen offset:{j*1024} {o.pubflags}")
    def gcalc(t, dst):
        if t < 2: a(f"s_add_u32 s{dst}, {sr(sG0)}, {t}")
        else:
            j = t - 1 if t <= 8 else t - 8
            a(f"s_add_u32 s{dst}, {sr(sMT)}, {j}")
            a(f"s_and_b32 s{dst}, s{dst}, 7")
            a(f"s_lshl_b32 s{dst}, s{dst}, 1")
            if t >= 9: a(f"s_add_u32 s{dst}, s{dst}, 1")
    def x_dma_t(t):
        gcalc(t, t1)
        a(f"s_lshl_b32 s{sXS}, s{t1}, 7")
        a(f"s_add_u32 s{sXS}, s{sXS}, {sr(sXO)}")
        for j in range(8):
            if j % 4 == 0:
                a(f"s_add_u32 m0, {sr(sXL)}, {(t%3)*SLOT + (j//4)*4096}")
                a("s_nop 0")
            vm(f'X{t}', f"buffer_load_dwordx4 v{XV[j]}, {sr(S_X,4)}, s{sXS} offen offset:{(j%4)*1024} {o.xflags} lds")
    vDEL = 108
    def refresh_issue():
        a("s_mov_b64 exec, 0xff")
        vm('RF', f"buffer_load_dword v{vCUR}, v{vFA}, {sr(S_W,4)}, s{sFO} offen sc1")
        a("s_mov_b64 exec, -1")
    def refresh_finish():
        a(f"v_sub_u32 v{vDEL}, v{vCUR}, v{vSNAP}")
        a("s_nop 1")
    def need(t):
        if t < 2: return
        level = 1 if t <= 8 else 2
        j = t - 1 if t <= 8 else t - 8
        a(f"s_add_u32 s{sLN2}, {sr(sMT)}, {j}"); a(f"s_and_b32 s{sLN2}, s{sLN2}, 7")
        a(f"s_mov_b32 s{t2}, 0")
        a.lab(f"L_need{t}")
        a(f"v_readlane_b32 s{t3}, v{vDEL}, s{sLN2}")
        a("s_nop 3")
        a(f"s_cmp_ge_u32 s{t3}, {level}")
        a(f"s_cbranch_scc1 L_nok{t}")
        a(f"s_add_u32 s{t2}, s{t2}, 1")
        a(f"s_cmp_lt_u32 s{t2}, {o.spin}")
        a(f"s_cbranch_scc0 L_nok{t}")
        a("s_mov_b64 exec, 0xff")
        a(f"buffer_load_dword v{vCUR}, v{vFA}, {sr(S_W,4)}, s{sFO} offen sc1")
        a("s_mov_b64 exec, -1")
        a("s_waitcnt vmcnt(0)")
        refresh_finish()
        a(f"s_branch L_need{t}")
        a.lab(f"L_nok{t}")
    def w_dma_t(t):
        need(t)
        w_dma_nocheck(t)
    def w_dma_nocheck(t):
        gcalc(t, t1)
        a(f"s_lshl_b32 s{sWS_}, s{t1}, 14")
        a(f"s_add_u32 s{sWS_}, s{sWS_}, {sr(sWO)}")
        a(f"s_lshl_b32 s{t0}, {sr(sP)}, 12")
        a(f"s_add_u32 m0, s{t0}, {(t%3)*SLOT + WOFF}")
        a("s_nop 0")
        for j in range(4):
            vm(f'W{t}', f"buffer_load_dwordx4 v{vWL}, {sr(S_W,4)}, s{sWS_} offen offset:{j*1024} {o.wflags} lds")
    def flag_store(inc, cond_sgpr_is_set):
        a(f"s_lshl_b32 s{t2}, {sr(sMT)}, 7")
        a(f"s_add_u32 s{t2}, s{t2}, s{sFO}")
        a(f"s_cmp_eq_u32 s{t3}, 1")
        a(f"s_cselect_b32 s{t2}, s{t2}, 0x7ff00000")
        a(f"v_readlane_b32 s{t1}, v{vSNAP}, {sr(sMT)}")
        a("s_nop 3")
        a(f"s_add_u32 s{t1}, s{t1}, {inc}")
        a(f"v_mov_b32 v{x[2]}, s{t1}")
        a(f"v_mov_b32 v{x[3]}, 0")
        a("s_mov_b64 exec, 1")
        vm('FL', f"buffer_store_dword v{x[2]}, v{x[3]}, {sr(S_W,4)}, s{t2} offen sc1")
        a("s_mov_b64 exec, -1")
    qb = []
    def qb_prepare():
        for i in range(8):
            qb.append(('q', i))
        qb.append(('s',)); qb.append(('z',)); qb.append(('a',))
    def qb_issue(n):
        for _ in range(n):
            if not qb: return
            k = qb.pop(0)
            if k[0] == 'q':
                a(f"s_add_u32 s{t1}, s{sQB}, {k[1]*N*4}")
                vm('QB', f"buffer_load_dwordx4 {vr(QB_+4*k[1],4)}, v{vq}, {sr(S_Q,4)}, s{t1} offen {o.qflags}")
            elif k[0] == 's': vm('QB', f"buffer_load_dwordx2 {vr(PB_,2)}, v{vp}, {sr(S_S,4)}, s{sPB_} offen")
            elif k[0] == 'z': vm('QB', f"buffer_load_dwordx2 {vr(PB_+2,2)}, v{vp}, {sr(S_Z,4)}, s{sPB_} offen")
            else: vm('QB', f"buffer_load_dwordx4 {vr(PB_+4,4)}, v{va}, {sr(S_A,4)}, s{sAB} offen")
    qb_prepare()
    def barrier(e):
        if o.estamp and e >= 1:
            a("s_waitcnt lgkmcnt(0)")
            a(f"v_writelane_b32 v255, s60, {e-1}")
            a(f"v_writelane_b32 v255, s62, {16+e-1}")
        a("s_barrier")
        if o.estamp:
            a("s_memrealtime s[60:61]")
            a("s_memtime s[62:63]")
    if o.qbearly: qb_issue(11)
    wait_vm('QA')
    stamp(1)
    dequant(QA, PA, 0, vw)
    wait_vm('X0', "lgkmcnt(0)")
    barrier(0)
    stamp(5)
    if not o.qbearly: qb_issue(11)
    publish('A')
    x_dma_t(1)
    def flagA():
        wait_vm('STA')
        a(f"v_mov_b32 v{x[1]}, {CNT}")
        a(f"v_mov_b32 v{x[2]}, 1")
        a("s_mov_b64 exec, 1")
        a(f"ds_add_rtn_u32 v{x[3]}, v{x[1]}, v{x[2]}")
        a("s_waitcnt lgkmcnt(0)")
        a("s_mov_b64 exec, -1")
        a(f"v_readfirstlane_b32 s{t3}, v{x[3]}")
        a("s_nop 3")
        a(f"s_cmp_eq_u32 s{t3}, 3")
        a(f"s_cselect_b32 s{t3}, 1, 0")
        flag_store(1, None)
        stamp(3)
    if o.bfirst:
        wait_vm('QB')
        dequant(QB_, PB_, 0, vwB)
        flagA()
    else:
        flagA()
        wait_vm('QB')
        dequant(QB_, PB_, 0, vwB)
    x_dma_t(2)
    if o.rf0:
        refresh_issue()
        wait_vm('RF', "lgkmcnt(0)")
        refresh_finish()
    else:
        wait_vm('X1', "lgkmcnt(0)")
    barrier(1)
    w_dma_t(2)
    if o.w3early:
        a(f"s_add_u32 s{sLN2}, {sr(sMT)}, 2"); a(f"s_and_b32 s{sLN2}, s{sLN2}, 7")
        a(f"v_readlane_b32 s{t3}, v{vDEL}, s{sLN2}")
        a("s_mov_b32 s99, 0")
        a("s_nop 2")
        a(f"s_cmp_ge_u32 s{t3}, 1")
        a("s_cbranch_scc0 L_w3late")
        a("s_mov_b32 s99, 1")
        sv = list(seq)
        w_dma_nocheck(3)
        seq[:] = sv
        a.lab("L_w3late")
    publish('B')
    x_dma_t(3)
    wait_vm('W2')
    barrier(2)
    for e in range(2, NSTEP - 1):
        if e == 2:
            if o.w3early:
                a("s_cmp_eq_u32 s99, 1")
                a("s_cbranch_scc1 L_w3done")
                w_dma_t(3)
                a.lab("L_w3done")
            else:
                w_dma_t(3)
        if e == o.fbe:
            a(f"s_cmp_eq_u32 {sr(sWV)}, 4")
            a(f"s_cselect_b32 s{t3}, 1, 0")
            flag_store(2, None)
        if e == o.rfe: refresh_issue()
        if e + 2 < NSTEP:
            w_dma_t(e + 2)
            x_dma_t(e + 2)
        wait_vm(f'X{e+1}' if e != 2 else 'W3')
        if e == o.rfe:
            wait_vm('RF')
            refresh_finish()
        barrier(e + 1)
    if o.stamp:
        a(f"s_cmp_eq_u32 {sr(sWV)}, 4")
        a("s_cbranch_scc0 L_end")
        if o.estamp:
            a("s_waitcnt lgkmcnt(0)")
            a("v_writelane_b32 v255, s60, 15")
            a("v_writelane_b32 v255, s62, 31")
            a(f"s_lshl_b32 s{t0}, s2, 8")
            a(f"s_add_u32 s{t0}, s{t0}, {129<<20}")
            a(f"s_add_u32 s96, s82, s{t0}")
            a(f"s_addc_u32 s97, s83, 0")
            a(f"v_lshlrev_b32 v254, 2, v{vL}")
            a("global_store_dword v254, v255, s[96:97]")
        dump_stamps((1, 3, 5))
    a.lab("L_end")
    a("s_endpgm")
    if o.helper:
        a.lab("L_helper")
        a(f"s_load_dwordx2 {sr(KA,2)}, s[0:1], 0")
        a("v_lshrrev_b32 v1, 6, v0")
        a("v_and_b32 v0, 63, v0")
        a(f"v_readfirstlane_b32 {sr(sWV)}, v1")
        a(f"s_sub_u32 s{t0}, s2, {NWG}")
        a(f"s_and_b32 {sr(sMT)}, s{t0}, 7")
        a(f"s_lshr_b32 s{t2}, s{t0}, 3")
        a(f"s_lshl_b32 s{t1}, {sr(sMT)}, 8")
        a(f"s_lshl_b32 s{t2}, s{t2}, 6")
        a(f"s_add_u32 s{t1}, s{t1}, s{t2}")
        a(f"s_lshl_b32 s{t3}, {sr(sWV)}, 3")
        a(f"s_add_u32 s{t1}, s{t1}, s{t3}")
        a(f"s_lshl_b32 s42, s{t1}, 11")
        a(f"s_lshl_b32 {sr(sG0)}, {sr(sMT)}, 1")
        a("v_lshrrev_b32 v3, 3, v0")
        a("v_and_b32 v4, 7, v0")
        a("v_lshlrev_b32 v4, 4, v4")
        a("v_lshl_add_u32 v3, v3, 11, v4")
        a("s_waitcnt lgkmcnt(0)")
        srd(S_X, KA, M*K*2)
        for t in range(o.hstart, NSTEP):
            if t < 2: a(f"s_add_u32 s{t0}, {sr(sG0)}, {t}")
            else:
                j = t - 1 if t <= 8 else t - 8
                a(f"s_add_u32 s{t0}, {sr(sMT)}, {j}"); a(f"s_and_b32 s{t0}, s{t0}, 7"); a(f"s_lshl_b32 s{t0}, s{t0}, 1")
                if t >= 9: a(f"s_add_u32 s{t0}, s{t0}, 1")
            a(f"s_lshl_b32 s{t0}, s{t0}, 7"); a(f"s_add_u32 s{t0}, s{t0}, s42")
            a(f"buffer_load_dwordx4 v[8:11], v3, {sr(S_X,4)}, s{t0} offen")
            if o.hdepth: a(f"s_waitcnt vmcnt({o.hdepth-1})")
        a("s_endpgm")
    if o.layout:
        i0 = a.l.index("@@CONS_BEGIN"); i1 = a.l.index("@@CONS_END")
        cons = a.l[i0+1:i1]
        a.l = a.l[:i0] + a.l[i1+1:] + cons
    a.raw('.section .rodata,"a"'); a.raw(".p2align 6"); a.raw(f".amdhsa_kernel {KNAME}")
    for d in ["next_free_vgpr 256", "next_free_sgpr 102", "accum_offset 256", "group_segment_fixed_size 0", "kernarg_size 64",
              "user_sgpr_count 2", "user_sgpr_kernarg_segment_ptr 1", "system_sgpr_workgroup_id_x 1"]:
        a.raw("  .amdhsa_" + d)
    a.raw(".end_amdhsa_kernel")
    return "\n".join(hdr) + "\n" + a.text()

if __name__ == "__main__":
    p = argparse.ArgumentParser()
    p.add_argument("-o", default="h.s")
    p.add_argument("--mfma", type=int, default=16)
    p.add_argument("--stamp", type=int, default=0)
    p.add_argument("--estamp", type=int, default=0)
    p.add_argument("--prio", type=int, default=0)
    p.add_argument("--rstride", type=int, default=2)
    p.add_argument("--stflags", default="nt")
    p.add_argument("--qflags", default="nt")
    p.add_argument("--xflags", default="")
    p.add_argument("--helper", type=int, default=1)
    p.add_argument("--hstart", type=int, default=0)
    p.add_argument("--spin", type=int, default=4000)
    p.add_argument("--nomfma", type=int, default=0)
    p.add_argument("--qbearly", type=int, default=1)
    p.add_argument("--tight", type=int, default=1)
    p.add_argument("--layout", type=int, default=1)
    p.add_argument("--w3early", type=int, default=0)
    p.add_argument("--rf0", type=int, default=1)
    p.add_argument("--bfirst", type=int, default=0)
    p.add_argument("--fbe", type=int, default=3)
    p.add_argument("--rfe", type=int, default=6)
    p.add_argument("--border", type=int, default=1)
    p.add_argument("--nopub", type=int, default=0)
    p.add_argument("--pubflags", default="sc1")
    p.add_argument("--wflags", default="sc1")
    p.add_argument("--dbgout", type=int, default=0)
    p.add_argument("--s1", type=int, default=1)
    p.add_argument("--hdepth", type=int, default=2)
    p.add_argument("--dbgp", type=int, default=0)
    p.add_argument("--flag", type=int, default=1)
    p.add_argument("--cstride", type=int, default=2)
    p.add_argument("--sleep", type=int, default=4)
    o = p.parse_args()
    o.pubflags = o.pubflags.replace('+', ' '); o.wflags = o.wflags.replace('+', ' ')
    open(o.o, "w").write(gen(o))
```

```python
import sys, argparse

KNAME = "standalone__weight_only_int_omniquant__prompt_kernel"
M, K, N = 2048, 1024, 3584
TM, TN, KS = 256, 128, 64
NSTEP = K // KS
NWG = (M // TM) * (N // TN)

class A:
    def __init__(s): s.l = []
    def __call__(s, x): s.l.append("    " + x)
    def lab(s, x): s.l.append(x + ":")
    def raw(s, x): s.l.append(x)
    def text(s): return "\n".join(s.l) + "\n"

def vr(b, n=1): return f"v{b}" if n == 1 else f"v[{b}:{b+n-1}]"
def sr(b, n=1): return f"s{b}" if n == 1 else f"s[{b}:{b+n-1}]"

def gen(o):
    a = A()
    SLOT = 49152
    WOFF = 32768
    WSZ = 16384
    STG = SLOT + WOFF
    CNT = 3 * SLOT
    LDS = CNT + 64
    M32 = (o.mfma == 32)
    S_X, S_Q, S_S, S_Z, S_A, S_O, S_W, S_D = 4, 8, 12, 16, 20, 24, 92, 96
    S_W, S_D = 88, 92
    sMT, sNT, sWV, sG0 = 28, 29, 30, 31
    sT = 32
    sXO, sXL = 33, 34
    t0, t1, t2, t3, t4 = 35, 36, 37, 38, 39
    sK24 = 40
    sP, sU = 41, 42
    sWO = 43
    sC = 44
    sFO = 100
    sST = 48
    sWS = 64
    sDBG = 66
    KA = 68
    sCY = 84
    hdr = [f"; @launch grid=({256 if o.helper else NWG},1,1) block=(512,1,1) lds={LDS}"]
    a.raw('.amdgcn_target "amdgcn-amd-amdhsa--gfx950"')
    a.raw(".text"); a.raw(f".globl {KNAME}"); a.raw(".p2align 8"); a.raw(f".type {KNAME},@function")
    a.lab(KNAME)
    def stamp(i):
        if o.stamp: a(f"s_memrealtime {sr(sST + 2*i, 2)}")
    def dbg_out(pairs):
        a("s_waitcnt lgkmcnt(0)")
        srd(S_D, KA+12, 256)
        a("s_mov_b64 exec, 1")
        a("v_mov_b32 v1, 0")
        for (idx, sg, inv) in pairs:
            if inv: a(f"s_not_b32 s{t0}, s{sg}")
            else: a(f"s_mov_b32 s{t0}, s{sg}")
            a(f"v_mov_b32 v2, s{t0}")
            a(f"buffer_atomic_umax v2, v1, {sr(S_D,4)}, 0 offen offset:{idx*4}")
            a("s_nop 1")
    def dump_stamps(idxs, extra=None):
        if o.dbgout:
            prs = []
            for i in idxs:
                prs.append((i, sST+2*i, i == 0))
                prs.append((8+i, sST+2*i, True))
            dbg_out(prs)
            return
        a("s_waitcnt lgkmcnt(0)")
        a(f"s_lshl_b32 s{t0}, s2, 6")
        a(f"s_add_u32 s{t0}, s{t0}, {128<<20}")
        a(f"s_add_u32 {sr(sWS)}, s82, s{t0}")
        a(f"s_addc_u32 {sr(sWS+1)}, s83, 0")
        a("v_mov_b32 v1, 0")
        if extra: extra()
        for i in idxs:
            a(f"v_mov_b32 v2, {sr(sST+2*i)}")
            a(f"v_mov_b32 v3, {sr(sST+2*i+1)}")
            a(f"global_store_dwordx2 v1, v[2:3], {sr(sWS,2)} offset:{i*8}")
            a("s_nop 1")
    def srd(b, p, size):
        a(f"s_mov_b32 s{b}, s{p}")
        a(f"s_and_b32 s{b+1}, s{p+1}, 0xffff")
        a(f"s_mov_b32 s{b+2}, {size}")
        a(f"s_mov_b32 s{b+3}, 0x20000")
    if o.helper:
        a("s_cmp_ge_u32 s2, 256")
        a("s_cbranch_scc1 L_end")
        a(f"s_cmp_ge_u32 s2, {NWG}")
        a("s_cbranch_scc1 L_helper")
    else:
        a(f"s_cmp_ge_u32 s2, {NWG}")
        a("s_cbranch_scc1 L_end")
    stamp(0)
    a(f"s_load_dwordx4 {sr(KA,4)}, s[0:1], 0")
    a(f"s_load_dwordx4 {sr(KA+4,4)}, s[0:1], 16")
    a(f"s_load_dwordx4 {sr(KA+8,4)}, s[0:1], 32")
    a(f"s_load_dwordx4 {sr(KA+12,4)}, s[0:1], 48")
    a("v_lshrrev_b32 v1, 6, v0")
    a("v_and_b32 v0, 63, v0")
    a(f"v_readfirstlane_b32 {sr(sWV)}, v1")
    a(f"s_and_b32 s{t0}, s2, 7")
    a(f"s_lshr_b32 s{t1}, s2, 3")
    a(f"s_mul_i32 s{t0}, s{t0}, 28")
    a(f"s_add_u32 s{t0}, s{t0}, s{t1}")
    a(f"s_lshr_b32 {sr(sNT)}, s{t0}, 3")
    a(f"s_and_b32 {sr(sMT)}, s{t0}, 7")
    a(f"s_lshl_b32 {sr(sG0)}, {sr(sMT)}, 1")
    a(f"s_and_b32 {sr(sP)}, {sr(sWV)}, 3")
    vL = 254
    a(f"v_mov_b32 v{vL}, v0")
    if o.layout:
        a(f"s_cmp_lt_u32 {sr(sWV)}, 4")
        a("s_cbranch_scc1 L_consumer")
        a.raw("@@CONS_BEGIN")
        a.lab("L_consumer")
    else:
        a(f"s_cmp_ge_u32 {sr(sWV)}, 4")
        a("s_cbranch_scc1 L_loader")

    XF = [128, 144]; WF = [160, 192]
    B = 224
    vLANE = vL
    vXA = [B+1, B+2, B+3, B+4]; vWA = [B+5, B+6, B+7, B+8]
    vT = [B+9+i for i in range(12)]
    if o.prio: a(f"s_setprio {o.prio}")
    a(f"v_mov_b32 v{vT[0]}, {CNT}")
    a(f"v_mov_b32 v{vT[1]}, 0")
    a(f"ds_write_b32 v{vT[0]}, v{vT[1]}")
    lo = vT[5]; hi = vT[6]; f = vT[7]; tt = vT[8]
    if M32:
        a(f"v_and_b32 v{lo}, 31, v{vLANE}")
        a(f"v_lshrrev_b32 v{hi}, 5, v{vLANE}")
        a(f"v_bfe_u32 v{f}, v{vLANE}, 1, 3")
        a(f"v_xor_b32 v{tt}, v{hi}, v{f}")
        a(f"v_lshlrev_b32 v{tt}, 4, v{tt}")
        a(f"v_lshl_add_u32 v{vXA[0]}, v{lo}, 7, v{tt}")
        a(f"s_lshl_b32 s{t0}, {sr(sWV)}, 13")
        a(f"v_add_u32 v{vXA[0]}, s{t0}, v{vXA[0]}")
        a(f"v_xor_b32 v{vXA[1]}, 32, v{vXA[0]}")
        a(f"v_xor_b32 v{vXA[2]}, 64, v{vXA[0]}")
        a(f"v_xor_b32 v{vXA[3]}, 96, v{vXA[0]}")
        a(f"v_bfe_u32 v{tt}, v{vLANE}, 4, 1")
        a(f"v_xor_b32 v{f}, v{f}, v{tt}")
        a(f"v_xor_b32 v{tt}, v{hi}, v{f}")
        a(f"v_lshlrev_b32 v{tt}, 4, v{tt}")
        a(f"v_lshl_add_u32 v{vWA[0]}, v{lo}, 7, v{tt}")
        a(f"v_add_u32 v{vWA[0]}, {WOFF}, v{vWA[0]}")
        a(f"v_xor_b32 v{vWA[1]}, 32, v{vWA[0]}")
        a(f"v_xor_b32 v{vWA[2]}, 64, v{vWA[0]}")
        a(f"v_xor_b32 v{vWA[3]}, 96, v{vWA[0]}")
    else:
        a(f"v_and_b32 v{lo}, 15, v{vLANE}")
        a(f"v_lshrrev_b32 v{hi}, 4, v{vLANE}")
        a(f"v_bfe_u32 v{f}, v{vLANE}, 1, 3")
        a(f"v_xor_b32 v{tt}, v{hi}, v{f}")
        a(f"v_lshlrev_b32 v{tt}, 4, v{tt}")
        a(f"v_lshl_add_u32 v{vWA[0]}, v{lo}, 7, v{tt}")
        a(f"s_lshl_b32 s{t0}, {sr(sWV)}, 13")
        a(f"v_add_u32 v{vXA[0]}, s{t0}, v{vWA[0]}")
        a(f"v_xor_b32 v{vXA[1]}, 64, v{vXA[0]}")
        a(f"v_add_u32 v{vWA[0]}, {WOFF}, v{vWA[0]}")
        a(f"v_xor_b32 v{vWA[1]}, 16, v{vWA[0]}")
        a(f"v_xor_b32 v{vWA[2]}, 64, v{vWA[0]}")
        a(f"v_xor_b32 v{vWA[3]}, 0x50, v{vWA[0]}")
    a("s_waitcnt lgkmcnt(0)")
    sOO = 42
    E = vT
    srd(S_O, KA+10, M*N*2)
    a(f"s_lshl_b32 s{t0}, {sr(sWV)}, 14")
    a(f"s_add_u32 s{t0}, s{t0}, {SLOT}")
    if M32:
        a(f"v_and_b32 v{E[0]}, 31, v{vLANE}")
        a(f"v_lshrrev_b32 v{E[1]}, 5, v{vLANE}")
    else:
        a(f"v_and_b32 v{E[0]}, 15, v{vLANE}")
        a(f"v_lshrrev_b32 v{E[1]}, 4, v{vLANE}")
    a(f"v_and_b32 v{E[2]}, 7, v{vLANE}")
    a(f"v_xor_b32 v{E[2]}, v{E[2]}, v{E[1]}")
    a(f"v_lshlrev_b32 v{E[2]}, 4, v{E[2]}")
    a(f"v_lshl_add_u32 v{E[3]}, v{E[0]}, 8, v{E[2]}")
    a(f"v_add_u32 v{E[3]}, s{t0}, v{E[3]}")
    a(f"v_xor_b32 v{E[4]}, 64, v{E[3]}")
    if M32:
        a(f"v_xor_b32 v{E[5]}, 32, v{E[3]}")
        a(f"v_xor_b32 v{E[6]}, 96, v{E[3]}")
    a(f"v_lshrrev_b32 v{E[7]}, 4, v{vLANE}")
    a(f"v_and_b32 v{E[8]}, 15, v{vLANE}")
    a(f"v_xor_b32 v{E[9]}, v{E[8]}, v{E[7]}")
    a(f"v_lshlrev_b32 v{E[9]}, 4, v{E[9]}")
    a(f"v_lshl_add_u32 v{E[9]}, v{E[7]}, 8, v{E[9]}")
    a(f"v_add_u32 v{E[9]}, s{t0}, v{E[9]}")
    a(f"v_xor_b32 v{E[10]}, 64, v{E[9]}")
    a(f"s_mov_b32 s{t1}, {N*2}")
    a(f"v_mul_lo_u32 v{E[11]}, s{t1}, v{E[7]}")
    a(f"v_lshl_add_u32 v{E[11]}, v{E[8]}, 4, v{E[11]}")
    a(f"s_lshl_b32 s{t0}, {sr(sMT)}, 8")
    a(f"s_lshl_b32 s{t1}, {sr(sWV)}, 6")
    a(f"s_add_u32 s{t0}, s{t0}, s{t1}")
    a(f"s_mul_i32 s{t0}, s{t0}, {N*2}")
    a(f"s_lshl_b32 s{t1}, {sr(sNT)}, 8")
    a(f"s_add_u32 s{sOO}, s{t0}, s{t1}")
    for i in range(128): a(f"v_mov_b32 v{i}, 0")
    for i in range(XF[1], XF[1]+16): a(f"v_mov_b32 v{i}, 0")
    for i in range(WF[1], WF[1]+32): a(f"v_mov_b32 v{i}, 0")
    a(f"s_mov_b32 {sr(sT)}, 0")
    a(f"s_mov_b32 s{sC}, {SLOT}"); a(f"s_mov_b32 s{sC+1}, {-2*SLOT & 0xffffffff}")
    a(f"s_mov_b32 s{sC+2}, 0")
    if o.stamp:
        a(f"s_memtime {sr(sCY,2)}")
    def phase(h, sread, smma, do_read=True, do_mma=True, late=()):
        reads = []
        if do_read:
            if M32:
                for ks in range(2):
                    for nb in range(4):
                        reads.append(f"ds_read_b128 {vr(WF[sread]+(ks*4+nb)*4,4)}, v{vWA[h*2+ks]} offset:{nb*4096}")
                        if nb < 2:
                            reads.append(f"ds_read_b128 {vr(XF[sread]+(ks*2+nb)*4,4)}, v{vXA[h*2+ks]} offset:{nb*4096}")
            else:
                for nb in range(8):
                    reads.append(f"ds_read_b128 {vr(WF[sread]+nb*4,4)}, v{vWA[h*2+(nb&1)]} offset:{nb*2048}")
                    if nb < 4:
                        reads.append(f"ds_read_b128 {vr(XF[sread]+nb*4,4)}, v{vXA[h]} offset:{nb*2048}")
        mm = []
        if do_mma:
            if M32:
                for ks in range(2):
                    for nb in range(4):
                        for mb in range(2):
                            c = (mb*4+nb)*16
                            mm.append(f"v_mfma_f32_32x32x16_bf16 {vr(c,16)}, {vr(WF[smma]+(ks*4+nb)*4,4)}, {vr(XF[smma]+(ks*2+mb)*4,4)}, {vr(c,16)}")
            else:
                for nb in range(8):
                    for mb in range(4):
                        c = (mb*8+nb)*4
                        mm.append(f"v_mfma_f32_16x16x32_bf16 {vr(c,4)}, {vr(WF[smma]+nb*4,4)}, {vr(XF[smma]+mb*4,4)}, {vr(c,4)}")
        ri = 0
        rstride = o.rstride if not M32 else 1
        late = list(late)
        for i, m in enumerate(mm):
            if not o.nomfma: a(m)
            if ri < len(reads) and (i % rstride == 0):
                a(reads[ri]); ri += 1
            elif ri >= len(reads) and late:
                a(late.pop(0))
        while ri < len(reads):
            a(reads[ri]); ri += 1
        for x_ in late: a(x_)
    nxa = 4 if M32 else 2
    FLAGB_ = 8 << 20
    cPB = WF[1]
    cA, cZ, cS = 245, 246, 247
    srd(S_W, KA+14, FLAGB_ + 224*128)
    sFS = 43
    a(f"s_lshl_b32 s{sFS}, {sr(sNT)}, 3")
    a(f"s_add_u32 s{sFS}, s{sFS}, {sr(sMT)}")
    a(f"s_lshl_b32 s{sFS}, s{sFS}, 7")
    a(f"s_add_u32 s{sFS}, s{sFS}, {FLAGB_}")
    a(f"v_mov_b32 v{cZ}, 0")
    a(f"buffer_load_dword v{cS}, v{cZ}, {sr(S_W,4)}, s{sFS} offen sc1")
    a(f"v_lshlrev_b32 v{cA}, 4, v{vLANE}")
    a(f"s_lshl_b32 s{t0}, {sr(sWV)}, 12")
    a(f"v_add_u32 v{248}, s{t0}, v{cA}")
    a(f"s_mul_i32 s{t1}, {sr(sNT)}, {16*WSZ}")
    a(f"s_add_u32 s{t1}, s{t1}, s{t0}")
    a(f"s_lshl_b32 s{t2}, {sr(sG0)}, 14")
    a(f"s_add_u32 s41, s{t1}, s{t2}")
    a("s_barrier")
    for j in range(4):
        a(f"ds_read_b128 {vr(cPB+j*4,4)}, v248 offset:{WOFF + j*1024}")
    for j in range(4):
        a(f"s_waitcnt lgkmcnt({3-j})")
        a(f"buffer_store_dwordx4 {vr(cPB+j*4,4)}, v{cA}, {sr(S_W,4)}, s41 offen offset:{j*1024} {o.pubflags}")
    sc = [f"s_add_u32 {sr(sT)}, {sr(sT)}, 1", f"s_add_u32 s{sC+2}, s{sC+2}, 1", f"s_cmp_eq_u32 s{sC+2}, 3",
          f"s_cselect_b32 s{t1}, s{sC+1}, s{sC}", f"s_cselect_b32 s{sC+2}, 0, s{sC+2}"]
    phase(0, 0, 1, do_mma=False)
    for x_ in sc: a(x_)
    a("s_waitcnt lgkmcnt(0)")
    va = [f"v_add_u32 v{vXA[i]}, s{t1}, v{vXA[i]}" for i in range(nxa)] + [f"v_add_u32 v{vWA[i]}, s{t1}, v{vWA[i]}" for i in range(4)]
    phase(1, 1, 0, late=va + ["s_waitcnt lgkmcnt(0)"])
    a("s_waitcnt vmcnt(0)")
    a(f"v_mov_b32 v{cA}, {CNT}")
    a(f"v_mov_b32 v248, 1")
    a("s_mov_b64 exec, 1")
    a(f"ds_add_rtn_u32 v249, v{cA}, v248")
    a("s_waitcnt lgkmcnt(0)")
    a(f"v_readfirstlane_b32 s{t3}, v249")
    a(f"v_add_u32 v{cS}, 1, v{cS}")
    a("s_nop 3")
    a(f"s_cmp_eq_u32 s{t3}, 3")
    a("s_cbranch_scc0 L_cnf")
    a(f"buffer_store_dword v{cS}, v{cZ}, {sr(S_W,4)}, s{sFS} offen sc1")
    a.lab("L_cnf")
    a("s_mov_b64 exec, -1")
    stamp(3)
    a.lab("L_cloop")
    a("s_barrier")
    if o.tight:
        sc = [f"s_add_u32 {sr(sT)}, {sr(sT)}, 1", f"s_add_u32 s{sC+2}, s{sC+2}, 1", f"s_cmp_eq_u32 s{sC+2}, 3",
              f"s_cselect_b32 s{t1}, s{sC+1}, s{sC}", f"s_cselect_b32 s{sC+2}, 0, s{sC+2}"]
        phase(0, 0, 1, late=sc)
        a("s_waitcnt lgkmcnt(0)")
        va = [f"v_add_u32 v{vXA[i]}, s{t1}, v{vXA[i]}" for i in range(nxa)] + [f"v_add_u32 v{vWA[i]}, s{t1}, v{vWA[i]}" for i in range(4)]
        phase(1, 1, 0, late=va + [f"s_cmp_lt_u32 {sr(sT)}, {NSTEP}", "s_waitcnt lgkmcnt(0)"])
        a("s_cbranch_scc1 L_cloop")
    else:
        phase(0, 0, 1)
        a("s_waitcnt lgkmcnt(0)")
        phase(1, 1, 0)
        a(f"s_add_u32 {sr(sT)}, {sr(sT)}, 1")
        a(f"s_add_u32 s{sC+2}, s{sC+2}, 1")
        a(f"s_cmp_eq_u32 s{sC+2}, 3")
        a(f"s_cselect_b32 s{t1}, s{sC+1}, s{sC}")
        a(f"s_cselect_b32 s{sC+2}, 0, s{sC+2}")
        a("s_waitcnt lgkmcnt(0)")
        for i in range(nxa): a(f"v_add_u32 v{vXA[i]}, s{t1}, v{vXA[i]}")
        for i in range(4): a(f"v_add_u32 v{vWA[i]}, s{t1}, v{vWA[i]}")
        a(f"s_cmp_lt_u32 {sr(sT)}, {NSTEP}")
        a("s_cbranch_scc1 L_cloop")
    assert not M32
    TPL = [128+4*i for i in range(4)] + [160+4*i for i in range(8)]
    tp = 0
    def nexttmp():
        nonlocal tp
        r = TPL[tp % len(TPL)]
        tp += 1
        return r
    ldsq = []
    def Ml(mb):
        return [f"v_mfma_f32_16x16x32_bf16 {vr((mb*8+nb)*4,4)}, {vr(WF[1]+nb*4,4)}, {vr(XF[1]+mb*4,4)}, {vr((mb*8+nb)*4,4)}" for nb in range(8)]
    def Wl(mb):
        out = []
        for P in range(4):
            r = nexttmp()
            for b in range(2):
                c = (mb*8+2*P+b)*4
                out.append((None, f"v_cvt_pk_bf16_f32 v{r+2*b}, v{c}, v{c+1}"))
                out.append((None, f"v_cvt_pk_bf16_f32 v{r+2*b+1}, v{c+2}, v{c+3}"))
            var = E[3] if (P & 1) == 0 else E[4]
            out.append((('W', mb, P), f"ds_write_b128 v{var}, {vr(r,4)} offset:{(P>>1)*128 + mb*4096}"))
        return out
    def Rl(mb):
        out = []
        for t in range(4):
            tg = mb*4 + t
            var = E[9] if (tg & 1) == 0 else E[10]
            out.append((('R', mb, t), f"ds_read_b128 {vr(mb*32+t*4,4)}, v{var} offset:{tg*1024}"))
        return out
    def emit(lst):
        for tag, txt in lst:
            a(txt)
            if tag: ldsq.append(tag)
    def mix(mm, lst):
        lst = list(lst); n = len(mm)
        per = (len(lst) + n - 1) // n
        for m in mm:
            if not o.nomfma: a(m)
            emit(lst[:per]); lst = lst[per:]
        emit(lst)
    def Sb(mb):
        for t in range(4):
            n = len(ldsq) - 1 - ldsq.index(('R', mb, t))
            a(f"s_waitcnt lgkmcnt({min(n,15)})")
            a(f"buffer_store_dwordx4 {vr(mb*32+t*4,4)}, v{E[11]}, {sr(S_O,4)}, s{sOO} offen {o.stflags}")
            a(f"s_add_u32 s{sOO}, s{sOO}, {4*N*2}")
    for m in Ml(0) + Ml(1):
        if not o.nomfma: a(m)
    mix(Ml(2), Wl(0))
    mix(Ml(3), Wl(1) + Rl(0))
    stamp(2)
    if o.stamp: a(f"s_memtime {sr(sCY+2,2)}")
    emit(Wl(2)); emit(Rl(1)); Sb(0)
    emit(Wl(3)); emit(Rl(2)); Sb(1)
    emit(Rl(3)); Sb(2); Sb(3)
    if o.stamp:
        a("s_waitcnt vmcnt(0)")
        stamp(4)
        a(f"s_cmp_eq_u32 {sr(sWV)}, 0")
        a("s_cbranch_scc0 L_end")
        def extra():
            a(f"s_sub_u32 s{sCY+2}, s{sCY+2}, s{sCY}")
            a(f"s_subb_u32 s{sCY+3}, s{sCY+3}, s{sCY+1}")
            a(f"v_mov_b32 v2, s{sCY+2}"); a(f"v_mov_b32 v3, s{sCY+3}")
            a(f"global_store_dwordx2 v1, v[2:3], {sr(sWS,2)} offset:56"); a("s_nop 1")
        dump_stamps((0, 2, 3, 4), extra)
    a("s_endpgm")

    if o.layout: a.raw("@@CONS_END")
    a.lab("L_loader")
    QA, QB_ = 0, 112
    PA, PB_ = 32, 144
    SP = 40; ZS = 44; AF = 48; T = 56; OUT = 64
    vq, vp, va, vo, vcq = 80, 81, 82, 83, 84
    vw = [85, 86, 87, 88]
    x = [89, 90, 91, 92]
    XV = [96+j for j in range(8)]
    vWL = 104
    vFA, vSNAP, vCUR = 105, 106, 107
    FLAGB = 8 << 20
    sXS, sM0 = 45, 46
    a(f"v_lshrrev_b32 v{x[0]}, 5, v{vL}")
    a(f"v_and_b32 v{vcq}, 31, v{vL}")
    a(f"s_lshl_b32 s{t0}, {sr(sP)}, 1")
    a(f"v_add_u32 v{vo}, s{t0}, v{x[0]}")
    a(f"s_mov_b32 s{t0}, {8*N*4}")
    a(f"v_mul_lo_u32 v{vq}, s{t0}, v{vo}")
    a(f"v_lshl_add_u32 v{vq}, v{vcq}, 4, v{vq}")
    a(f"s_mul_i32 s{t0}, {sr(sG0)}, {64*N*4}")
    a(f"s_lshl_b32 s{t1}, {sr(sNT)}, 9")
    a(f"s_add_u32 s{t0}, s{t0}, s{t1}")
    a(f"v_lshlrev_b32 v{vFA}, 7, v{vL}")
    a(f"s_lshl_b32 s{sFO}, {sr(sNT)}, 10")
    a(f"s_add_u32 s{sFO}, s{sFO}, {FLAGB}")
    a("s_waitcnt lgkmcnt(0)")
    srd(S_W, KA+14, FLAGB + 224*128)
    a("s_mov_b64 exec, 0xff")
    a(f"buffer_load_dword v{vSNAP}, v{vFA}, {sr(S_W,4)}, s{sFO} offen sc1")
    a("s_mov_b64 exec, -1")
    srd(S_Q, KA+2, K*N*4)
    first = [True]
    def q_issue(Q, P):
        for i in range(8):
            a(f"buffer_load_dwordx4 {vr(Q+4*i,4)}, v{vq}, {sr(S_Q,4)}, s{t0} offen {o.qflags}")
            a(f"s_add_u32 s{t0}, s{t0}, {N*4}")
        a(f"v_lshlrev_b32 v{vp}, 3, v{vcq}")
        a(f"v_lshlrev_b32 v{va}, 4, v{vo}")
        a(f"s_mul_i32 s{t2}, {sr(sG0)}, {N*2}")
        a(f"s_lshl_b32 s{t1}, {sr(sNT)}, 8")
        a(f"s_add_u32 s{t2}, s{t2}, s{t1}")
        a(f"s_lshl_b32 s{t3}, {sr(sG0)}, 7")
        srd(S_S, KA+4, 16*N*2); srd(S_Z, KA+6, 16*N*2); srd(S_A, KA+8, K*2)
        a(f"buffer_load_dwordx2 {vr(P,2)}, v{vp}, {sr(S_S,4)}, s{t2} offen")
        a(f"buffer_load_dwordx2 {vr(P+2,2)}, v{vp}, {sr(S_Z,4)}, s{t2} offen")
        a(f"buffer_load_dwordx4 {vr(P+4,4)}, v{va}, {sr(S_A,4)}, s{t3} offen")
        a(f"v_lshrrev_b32 v{x[0]}, 3, v{vL}")
        a(f"v_and_b32 v{x[1]}, 7, v{vL}")
        a(f"v_lshrrev_b32 v{x[2]}, 1, v{x[0]}")
        a(f"v_xor_b32 v{x[1]}, v{x[1]}, v{x[2]}")
        a(f"v_lshlrev_b32 v{x[1]}, 4, v{x[1]}")
        a(f"v_lshl_add_u32 v{x[1]}, v{x[0]}, 11, v{x[1]}")
        a(f"v_xor_b32 v{x[2]}, 64, v{x[1]}")
    q_issue(QA, PA)
    srd(S_X, KA, M*K*2)
    for j in range(8):
        src = x[1] if j % 2 == 0 else x[2]
        a(f"v_add_u32 v{XV[j]}, {j*16384 - 1024*(j%4)}, v{src}")
    a(f"v_lshlrev_b32 v{vWL}, 4, v{vL}")
    a(f"s_lshl_b32 s{t1}, {sr(sMT)}, 8")
    a(f"s_lshl_b32 s{t4}, {sr(sP)}, 6")
    a(f"s_add_u32 s{t1}, s{t1}, s{t4}")
    a(f"s_lshl_b32 {sr(sXO)}, s{t1}, 11")
    a(f"s_lshl_b32 {sr(sXL)}, {sr(sP)}, 13")
    def x_dma():
        for j in range(8):
            if j % 4 == 0:
                a(f"s_add_u32 m0, s{sM0}, {(j//4)*4096}")
                a("s_nop 0")
            a(f"buffer_load_dwordx4 v{XV[j]}, {sr(S_X,4)}, s{sXS} offen offset:{(j%4)*1024} {o.xflags} lds")
    a(f"s_lshl_b32 s{sXS}, {sr(sG0)}, 7")
    a(f"s_add_u32 s{sXS}, s{sXS}, {sr(sXO)}")
    a(f"s_mov_b32 s{sM0}, {sr(sXL)}")
    x_dma()
    sQB, sPB_, sAB = 97, 98, 99
    a(f"s_add_u32 s{sQB}, s{t0}, {56*N*4}")
    a(f"s_add_u32 s{sPB_}, s{t2}, {N*2}")
    a(f"s_add_u32 s{sAB}, s{t3}, 128")
    if M32:
        a(f"v_lshrrev_b32 v{x[0]}, 3, v{vcq}"); a(f"v_lshlrev_b32 v{x[0]}, 5, v{x[0]}")
        a(f"v_bfe_u32 v{x[1]}, v{vcq}, 2, 1"); a(f"v_lshl_add_u32 v{x[0]}, v{x[1]}, 4, v{x[0]}")
        a(f"v_and_b32 v{x[1]}, 1, v{vcq}"); a(f"v_lshl_add_u32 v{x[0]}, v{x[1]}, 3, v{x[0]}")
        a(f"v_bfe_u32 v{x[1]}, v{vcq}, 1, 1"); a(f"v_lshl_add_u32 v{x[0]}, v{x[1]}, 2, v{x[0]}")
    else:
        a(f"v_lshrrev_b32 v{x[0]}, 3, v{vcq}"); a(f"v_lshlrev_b32 v{x[0]}, 5, v{x[0]}")
        a(f"v_and_b32 v{x[1]}, 1, v{vcq}"); a(f"v_lshl_add_u32 v{x[0]}, v{x[1]}, 4, v{x[0]}")
        a(f"v_bfe_u32 v{x[1]}, v{vcq}, 1, 2"); a(f"v_lshl_add_u32 v{x[0]}, v{x[1]}, 2, v{x[0]}")
    for i in range(4):
        a(f"v_add_u32 v{x[1]}, {i}, v{x[0]}")
        a(f"v_bfe_u32 v{x[2]}, v{x[1]}, 1, 3")
        a(f"v_bfe_u32 v{x[3]}, v{x[1]}, 4, 1")
        a(f"v_xor_b32 v{x[2]}, v{x[2]}, v{x[3]}")
        a(f"v_xor_b32 v{x[2]}, v{x[2]}, v{vo}")
        a(f"v_lshlrev_b32 v{x[2]}, 4, v{x[2]}")
        a(f"v_lshl_add_u32 v{vw[i]}, v{x[1]}, 7, v{x[2]}")
        a(f"v_add_u32 v{vw[i]}, {WOFF}, v{vw[i]}")
    a(f"s_mov_b32 {sr(sK24)}, 0x4b800000")
    a("v_mov_b32 v108, 0")
    a(f"s_mul_i32 {sr(sWO)}, {sr(sNT)}, {16*WSZ}")
    a(f"s_lshl_b32 s{t0}, {sr(sP)}, 12")
    a(f"s_add_u32 {sr(sWO)}, {sr(sWO)}, s{t0}")
    sWS_ = 47
    sM1 = t4
    sMASK = 101
    sLN2, sLV = 101, 42
    def dequant(Q, P, off, wr):
        RS, RZ, RA = P, P+2, P+4
        for c in range(4):
            if c & 1 == 0:
                a(f"v_lshlrev_b32 v{SP+c}, 16, v{RS+c//2}")
                a(f"v_lshlrev_b32 v{ZS+c}, 16, v{RZ+c//2}")
            else:
                a(f"v_and_b32 v{SP+c}, 0xffff0000, v{RS+c//2}")
                a(f"v_and_b32 v{ZS+c}, 0xffff0000, v{RZ+c//2}")
        for c in range(4): a(f"v_mul_f32 v{ZS+c}, -v{ZS+c}, v{SP+c}")
        for c in range(4): a(f"v_mul_f32 v{SP+c}, {sr(sK24)}, v{SP+c}")
        for i in range(8):
            if i & 1 == 0: a(f"v_lshlrev_b32 v{AF+i}, 16, v{RA+i//2}")
            else: a(f"v_and_b32 v{AF+i}, 0xffff0000, v{RA+i//2}")
        for c in range(4):
            for i in range(8):
                a(f"v_fma_mix_f32 v{T+i}, v{Q+4*i+c}, v{SP+c}, v{ZS+c} op_sel_hi:[1,0,0]")
            for i in range(8):
                a(f"v_mul_f32 v{T+i}, v{T+i}, v{AF+i}")
            for i in range(0, 8, 2):
                a(f"v_cvt_pk_bf16_f32 v{OUT+4*c+i//2}, v{T+i}, v{T+i+1}")
            a(f"ds_write_b128 v{wr[c]}, {vr(OUT+4*c,4)} offset:{off}")
    seq = ['SNAP'] + ['QA']*11 + ['X0']*8
    def vm(tag, txt):
        a(txt); seq.append(tag)
    def wait_vm(tag, extra=""):
        idx = max(i for i, t in enumerate(seq) if t == tag)
        n = len(seq) - 1 - idx
        a(f"s_waitcnt vmcnt({min(n,63)}) {extra}".rstrip())
    PB = 0
    vrbA, vrbB = 93, 94
    vwB = [109, 110, 111, 95]
    a(f"v_add_u32 v{vrbA}, s{t0}, v{vWL}")
    a(f"v_add_u32 v{vrbA}, {WOFF}, v{vrbA}")
    a(f"v_add_u32 v{vrbB}, {STG - WOFF}, v{vrbA}")
    for i in range(4): a(f"v_add_u32 v{vwB[i]}, {STG - WOFF}, v{vw[i]}")
    def publish(which):
        rb = vrbA if which == 'A' else vrbB
        for j in range(4):
            a(f"ds_read_b128 {vr(PB+j*4,4)}, v{rb} offset:{j*1024}")
        a(f"s_add_u32 s{t1}, {sr(sG0)}, {0 if which == 'A' else 1}")
        a(f"s_lshl_b32 s{t1}, s{t1}, 14")
        a(f"s_add_u32 s{t1}, s{t1}, {sr(sWO)}")
        for j in range(4):
            a(f"s_waitcnt lgkmcnt({3-j})")
            vm('ST'+which, f"buffer_store_dwordx4 {vr(PB+j*4,4)}, v{vWL}, {sr(S_W,4)}, s{t1} offen offset:{j*1024} {o.pubflags}")
    def gcalc(t, dst):
        if t < 2: a(f"s_add_u32 s{dst}, {sr(sG0)}, {t}")
        else:
            j = t - 1 if t <= 8 else t - 8
            a(f"s_add_u32 s{dst}, {sr(sMT)}, {j}")
            a(f"s_and_b32 s{dst}, s{dst}, 7")
            a(f"s_lshl_b32 s{dst}, s{dst}, 1")
            if t >= 9: a(f"s_add_u32 s{dst}, s{dst}, 1")
    def x_dma_t(t):
        gcalc(t, t1)
        a(f"s_lshl_b32 s{sXS}, s{t1}, 7")
        a(f"s_add_u32 s{sXS}, s{sXS}, {sr(sXO)}")
        for j in range(8):
            if j % 4 == 0:
                a(f"s_add_u32 m0, {sr(sXL)}, {(t%3)*SLOT + (j//4)*4096}")
                a("s_nop 0")
            vm(f'X{t}', f"buffer_load_dwordx4 v{XV[j]}, {sr(S_X,4)}, s{sXS} offen offset:{(j%4)*1024} {o.xflags} lds")
    vDEL = 108
    def refresh_issue():
        a("s_mov_b64 exec, 0xff")
        vm('RF', f"buffer_load_dword v{vCUR}, v{vFA}, {sr(S_W,4)}, s{sFO} offen sc1")
        a("s_mov_b64 exec, -1")
    def refresh_finish():
        a(f"v_sub_u32 v{vDEL}, v{vCUR}, v{vSNAP}")
        a("s_nop 1")
    def need(t):
        if t < 2: return
        level = 1 if t <= 8 else 2
        j = t - 1 if t <= 8 else t - 8
        a(f"s_add_u32 s{sLN2}, {sr(sMT)}, {j}"); a(f"s_and_b32 s{sLN2}, s{sLN2}, 7")
        a(f"s_mov_b32 s{t2}, 0")
        a.lab(f"L_need{t}")
        a(f"v_readlane_b32 s{t3}, v{vDEL}, s{sLN2}")
        a("s_nop 3")
        a(f"s_cmp_ge_u32 s{t3}, {level}")
        a(f"s_cbranch_scc1 L_nok{t}")
        a(f"s_add_u32 s{t2}, s{t2}, 1")
        a(f"s_cmp_lt_u32 s{t2}, {o.spin}")
        a(f"s_cbranch_scc0 L_nok{t}")
        a("s_mov_b64 exec, 0xff")
        a(f"buffer_load_dword v{vCUR}, v{vFA}, {sr(S_W,4)}, s{sFO} offen sc1")
        a("s_mov_b64 exec, -1")
        a("s_waitcnt vmcnt(0)")
        refresh_finish()
        a(f"s_branch L_need{t}")
        a.lab(f"L_nok{t}")
    def w_dma_t(t):
        need(t)
        w_dma_nocheck(t)
    def w_dma_nocheck(t):
        gcalc(t, t1)
        a(f"s_lshl_b32 s{sWS_}, s{t1}, 14")
        a(f"s_add_u32 s{sWS_}, s{sWS_}, {sr(sWO)}")
        a(f"s_lshl_b32 s{t0}, {sr(sP)}, 12")
        a(f"s_add_u32 m0, s{t0}, {(t%3)*SLOT + WOFF}")
        a("s_nop 0")
        for j in range(4):
            vm(f'W{t}', f"buffer_load_dwordx4 v{vWL}, {sr(S_W,4)}, s{sWS_} offen offset:{j*1024} {o.wflags} lds")
    def flag_store(inc, cond_sgpr_is_set):
        a(f"s_lshl_b32 s{t2}, {sr(sMT)}, 7")
        a(f"s_add_u32 s{t2}, s{t2}, s{sFO}")
        a(f"s_cmp_eq_u32 s{t3}, 1")
        a(f"s_cselect_b32 s{t2}, s{t2}, 0x7ff00000")
        a(f"v_readlane_b32 s{t1}, v{vSNAP}, {sr(sMT)}")
        a("s_nop 3")
        a(f"s_add_u32 s{t1}, s{t1}, {inc}")
        a(f"v_mov_b32 v{x[2]}, s{t1}")
        a(f"v_mov_b32 v{x[3]}, 0")
        a("s_mov_b64 exec, 1")
        vm('FL', f"buffer_store_dword v{x[2]}, v{x[3]}, {sr(S_W,4)}, s{t2} offen sc1")
        a("s_mov_b64 exec, -1")
    qb = []
    def qb_prepare():
        for i in range(8):
            qb.append(('q', i))
        qb.append(('s',)); qb.append(('z',)); qb.append(('a',))
    def qb_issue(n):
        for _ in range(n):
            if not qb: return
            k = qb.pop(0)
            if k[0] == 'q':
                a(f"s_add_u32 s{t1}, s{sQB}, {k[1]*N*4}")
                vm('QB', f"buffer_load_dwordx4 {vr(QB_+4*k[1],4)}, v{vq}, {sr(S_Q,4)}, s{t1} offen {o.qflags}")
            elif k[0] == 's': vm('QB', f"buffer_load_dwordx2 {vr(PB_,2)}, v{vp}, {sr(S_S,4)}, s{sPB_} offen")
            elif k[0] == 'z': vm('QB', f"buffer_load_dwordx2 {vr(PB_+2,2)}, v{vp}, {sr(S_Z,4)}, s{sPB_} offen")
            else: vm('QB', f"buffer_load_dwordx4 {vr(PB_+4,4)}, v{va}, {sr(S_A,4)}, s{sAB} offen")
    qb_prepare()
    def barrier(e):
        if o.estamp and e >= 1:
            a("s_waitcnt lgkmcnt(0)")
            a(f"v_writelane_b32 v255, s60, {e-1}")
            a(f"v_writelane_b32 v255, s62, {16+e-1}")
        a("s_barrier")
        if o.estamp:
            a("s_memrealtime s[60:61]")
            a("s_memtime s[62:63]")
    if o.qbearly: qb_issue(11)
    wait_vm('QA')
    stamp(1)
    dequant(QA, PA, 0, vw)
    wait_vm('X0', "lgkmcnt(0)")
    barrier(0)
    stamp(5)
    x_dma_t(1)
    wait_vm('QB')
    dequant(QB_, PB_, 0, vwB)
    x_dma_t(2)
    if o.rf0:
        refresh_issue()
        wait_vm('RF', "lgkmcnt(0)")
        refresh_finish()
    else:
        wait_vm('X1', "lgkmcnt(0)")
    barrier(1)
    w_dma_t(2)
    if o.w3early:
        a(f"s_add_u32 s{sLN2}, {sr(sMT)}, 2"); a(f"s_and_b32 s{sLN2}, s{sLN2}, 7")
        a(f"v_readlane_b32 s{t3}, v{vDEL}, s{sLN2}")
        a("s_mov_b32 s99, 0")
        a("s_nop 2")
        a(f"s_cmp_ge_u32 s{t3}, 1")
        a("s_cbranch_scc0 L_w3late")
        a("s_mov_b32 s99, 1")
        sv = list(seq)
        w_dma_nocheck(3)
        seq[:] = sv
        a.lab("L_w3late")
    publish('B')
    x_dma_t(3)
    wait_vm('W2')
    barrier(2)
    for e in range(2, NSTEP - 1):
        if e == 2:
            if o.w3early:
                a("s_cmp_eq_u32 s99, 1")
                a("s_cbranch_scc1 L_w3done")
                w_dma_t(3)
                a.lab("L_w3done")
            else:
                w_dma_t(3)
        if e == o.fbe:
            a(f"s_cmp_eq_u32 {sr(sWV)}, 4")
            a(f"s_cselect_b32 s{t3}, 1, 0")
            flag_store(2, None)
        if e == o.rfe: refresh_issue()
        if e + 2 < NSTEP:
            w_dma_t(e + 2)
            x_dma_t(e + 2)
        wait_vm(f'X{e+1}' if e != 2 else 'W3')
        if e == o.rfe:
            wait_vm('RF')
            refresh_finish()
        barrier(e + 1)
    if o.stamp:
        a(f"s_cmp_eq_u32 {sr(sWV)}, 4")
        a("s_cbranch_scc0 L_end")
        if o.estamp:
            a("s_waitcnt lgkmcnt(0)")
            a("v_writelane_b32 v255, s60, 15")
            a("v_writelane_b32 v255, s62, 31")
            a(f"s_lshl_b32 s{t0}, s2, 8")
            a(f"s_add_u32 s{t0}, s{t0}, {129<<20}")
            a(f"s_add_u32 s96, s82, s{t0}")
            a(f"s_addc_u32 s97, s83, 0")
            a(f"v_lshlrev_b32 v254, 2, v{vL}")
            a("global_store_dword v254, v255, s[96:97]")
        dump_stamps((1, 5))
    a.lab("L_end")
    a("s_endpgm")
    if o.helper:
        a.lab("L_helper")
        a(f"s_load_dwordx2 {sr(KA,2)}, s[0:1], 0")
        a("v_lshrrev_b32 v1, 6, v0")
        a("v_and_b32 v0, 63, v0")
        a(f"v_readfirstlane_b32 {sr(sWV)}, v1")
        a(f"s_sub_u32 s{t0}, s2, {NWG}")
        a(f"s_and_b32 {sr(sMT)}, s{t0}, 7")
        a(f"s_lshr_b32 s{t2}, s{t0}, 3")
        a(f"s_lshl_b32 s{t1}, {sr(sMT)}, 8")
        a(f"s_lshl_b32 s{t2}, s{t2}, 6")
        a(f"s_add_u32 s{t1}, s{t1}, s{t2}")
        a(f"s_lshl_b32 s{t3}, {sr(sWV)}, 3")
        a(f"s_add_u32 s{t1}, s{t1}, s{t3}")
        a(f"s_lshl_b32 s42, s{t1}, 11")
        a(f"s_lshl_b32 {sr(sG0)}, {sr(sMT)}, 1")
        a("v_lshrrev_b32 v3, 3, v0")
        a("v_and_b32 v4, 7, v0")
        a("v_lshlrev_b32 v4, 4, v4")
        a("v_lshl_add_u32 v3, v3, 11, v4")
        a("s_waitcnt lgkmcnt(0)")
        srd(S_X, KA, M*K*2)
        for t in range(o.hstart, NSTEP):
            if t < 2: a(f"s_add_u32 s{t0}, {sr(sG0)}, {t}")
            else:
                j = t - 1 if t <= 8 else t - 8
                a(f"s_add_u32 s{t0}, {sr(sMT)}, {j}"); a(f"s_and_b32 s{t0}, s{t0}, 7"); a(f"s_lshl_b32 s{t0}, s{t0}, 1")
                if t >= 9: a(f"s_add_u32 s{t0}, s{t0}, 1")
            a(f"s_lshl_b32 s{t0}, s{t0}, 7"); a(f"s_add_u32 s{t0}, s{t0}, s42")
            a(f"buffer_load_dwordx4 v[8:11], v3, {sr(S_X,4)}, s{t0} offen")
            if o.hdepth: a(f"s_waitcnt vmcnt({o.hdepth-1})")
        a("s_endpgm")
    if o.layout:
        i0 = a.l.index("@@CONS_BEGIN"); i1 = a.l.index("@@CONS_END")
        cons = a.l[i0+1:i1]
        a.l = a.l[:i0] + a.l[i1+1:] + cons
    a.raw('.section .rodata,"a"'); a.raw(".p2align 6"); a.raw(f".amdhsa_kernel {KNAME}")
    for d in ["next_free_vgpr 256", "next_free_sgpr 102", "accum_offset 256", "group_segment_fixed_size 0", "kernarg_size 64",
              "user_sgpr_count 2", "user_sgpr_kernarg_segment_ptr 1", "system_sgpr_workgroup_id_x 1"]:
        a.raw("  .amdhsa_" + d)
    a.raw(".end_amdhsa_kernel")
    return "\n".join(hdr) + "\n" + a.text()

if __name__ == "__main__":
    p = argparse.ArgumentParser()
    p.add_argument("-o", default="h.s")
    p.add_argument("--mfma", type=int, default=16)
    p.add_argument("--stamp", type=int, default=0)
    p.add_argument("--estamp", type=int, default=0)
    p.add_argument("--prio", type=int, default=0)
    p.add_argument("--rstride", type=int, default=2)
    p.add_argument("--stflags", default="nt")
    p.add_argument("--qflags", default="nt")
    p.add_argument("--xflags", default="")
    p.add_argument("--helper", type=int, default=1)
    p.add_argument("--hstart", type=int, default=0)
    p.add_argument("--spin", type=int, default=4000)
    p.add_argument("--nomfma", type=int, default=0)
    p.add_argument("--qbearly", type=int, default=1)
    p.add_argument("--tight", type=int, default=1)
    p.add_argument("--layout", type=int, default=1)
    p.add_argument("--w3early", type=int, default=0)
    p.add_argument("--rf0", type=int, default=1)
    p.add_argument("--bfirst", type=int, default=0)
    p.add_argument("--fbe", type=int, default=3)
    p.add_argument("--rfe", type=int, default=6)
    p.add_argument("--border", type=int, default=1)
    p.add_argument("--nopub", type=int, default=0)
    p.add_argument("--pubflags", default="sc1")
    p.add_argument("--wflags", default="sc1")
    p.add_argument("--dbgout", type=int, default=0)
    p.add_argument("--s1", type=int, default=1)
    p.add_argument("--hdepth", type=int, default=2)
    p.add_argument("--dbgp", type=int, default=0)
    p.add_argument("--flag", type=int, default=1)
    p.add_argument("--cstride", type=int, default=2)
    p.add_argument("--sleep", type=int, default=4)
    o = p.parse_args()
    o.pubflags = o.pubflags.replace('+', ' '); o.wflags = o.wflags.replace('+', ' ')
    open(o.o, "w").write(gen(o))
```
